```python
import torch

def _softmax(x, axis=-1):
    return torch.softmax(x, dim=axis)
def _gelu(x):
    return torch.nn.functional.gelu(x, approximate="tanh")
def _silu(x):
    return torch.nn.functional.silu(x)
def _sigmoid(x):
    return torch.sigmoid(x)
def _layernorm(x, axis=-1, eps=1e-5):
    m = x.mean(dim=axis, keepdim=True)
    v = x.var(dim=axis, keepdim=True, unbiased=False)
    return (x - m) / torch.sqrt(v + eps)
def _scatter_add(tgt, idx, src, axis=0):
    return tgt.clone().index_add_(axis, idx, src)
def _segment_sum(src, seg, n):
    out = torch.zeros((n,) + src.shape[1:], dtype=src.dtype)
    return out.index_add_(0, seg, src)
def _pad(x, pw):
    flat = tuple(v for pair in reversed(pw) for v in pair)
    return torch.nn.functional.pad(x, flat)

kernel_name = 'parallel_sum__compressed_kv_cla__swiglu_ffn__prompt'

def setup_inputs():

    _w = (lambda a: (lambda t: t.to(torch.bfloat16) if t.is_floating_point() else t)(torch.as_tensor(a)))
    def _A_setup():
        B, H, Sq, Sk, D, M = 1, 32, 2048, 2048, 128, 512
        Dc = 4 * D
        return {
            "x": _w((lambda *s: torch.randn(*s, dtype=torch.bfloat16) * 0.05)(B, Sq, M)),
            "c_kv": _w((lambda *s: torch.randn(*s, dtype=torch.bfloat16) * 1.6)(B, Sk, Dc)),
            "w_q": _w((lambda *s: torch.randn(*s, dtype=torch.bfloat16) * 0.8)(M, H, D) * (M ** -0.5)),
            "w_uk": _w((lambda *s: torch.randn(*s, dtype=torch.bfloat16) * 0.8)(Dc, H, D) * (Dc ** -0.5)),
            "w_uv": _w((lambda *s: torch.randn(*s, dtype=torch.bfloat16) * 1.6)(Dc, H, D) * (Dc ** -0.5)),
            "w_o": _w((lambda *s: torch.randn(*s, dtype=torch.bfloat16) * 1.6)(H, D, M) * ((H * D) ** -0.5)),
        }
    _A_in = _A_setup()

    def _B_setup():
        B, S, D, F = 1, 2048, 512, 1376
        return {
            "x": _w((lambda *s: torch.randn(*s, dtype=torch.bfloat16) * 0.05)(B, S, D)),
            "w_gate": _w((lambda *s: torch.randn(*s, dtype=torch.bfloat16) * 0.05)(D, F)),
            "w_up": _w((lambda *s: torch.randn(*s, dtype=torch.bfloat16) * 0.05)(D, F)),
            "w_down": _w((lambda *s: torch.randn(*s, dtype=torch.bfloat16) * 0.05)(F, D)),
        }
    _B_in = _B_setup()

    return {
        "A_x": _A_in["x"],
        "A_c_kv": _A_in["c_kv"],
        "A_w_q": _A_in["w_q"],
        "A_w_uk": _A_in["w_uk"],
        "A_w_uv": _A_in["w_uv"],
        "A_w_o": _A_in["w_o"],
        "B_x": _B_in["x"],
        "B_w_gate": _B_in["w_gate"],
        "B_w_up": _B_in["w_up"],
        "B_w_down": _B_in["w_down"],
    }

def reference(A_x, A_c_kv, A_w_q, A_w_uk, A_w_uv, A_w_o, B_x, B_w_gate, B_w_up, B_w_down):
    def _A_ref(x, c_kv, w_q, w_uk, w_uv, w_o):
        B, Sq, M = x.shape[0], x.shape[1], x.shape[2]
        Sk = c_kv.shape[1]
        H, D = w_q.shape[1], w_q.shape[2]
        q = torch.einsum("bqm,mhd->bhqd", x, w_q)
        k = torch.einsum("bkc,chd->bhkd", c_kv, w_uk)
        v = torch.einsum("bkc,chd->bhkd", c_kv, w_uv)
        scores = torch.einsum("bhqd,bhkd->bhqk", q, k) * (D ** -0.5)
        off = Sk - Sq
        qi = torch.arange(Sq)[:, None]
        kj = torch.arange(Sk)[None, :]
        cmask = kj <= (qi + off)
        scores = torch.where(cmask[None, None], scores, -1e9)
        p = _softmax(scores, axis=-1)
        ctx = torch.einsum("bhqk,bhkd->bhqd", p, v)
        return torch.einsum("bhqd,hdm->bqm", ctx, w_o)

    def _B_ref(x, w_gate, w_up, w_down):
        g = _silu(x @ w_gate)
        u = x @ w_up
        return (g * u) @ w_down

    x = A_x
    xn = _layernorm(x, axis=-1)
    return x + _A_ref(xn, A_c_kv, A_w_q, A_w_uk, A_w_uv, A_w_o) + _B_ref(xn, B_w_gate, B_w_up, B_w_down)
```

```python
import re, sys

REG_RE = re.compile(r'^(-|\|)?(abs\()?([vas])(\d+)\)?\|?$')
RNG_RE = re.compile(r'^(-)?([vas])\[(\d+):(\d+)\]$')

def regs_of(tok):
    tok = tok.strip()
    m = RNG_RE.match(tok)
    if m:
        return [f"{m.group(2)}{i}" for i in range(int(m.group(3)), int(m.group(4)) + 1)]
    m = REG_RE.match(tok)
    if m:
        return [f"{m.group(3)}{m.group(4)}"]
    if tok in ('vcc', 'exec', 'm0', 'scc'):
        return [tok]
    if tok in ('vcc_lo', 'vcc_hi'):
        return ['vcc']
    if tok in ('exec_lo', 'exec_hi'):
        return ['exec']
    return []

TRANS = ('v_exp_f32', 'v_log_f32', 'v_rcp_f32', 'v_rsq_f32', 'v_sqrt_f32', 'v_sin_f32', 'v_cos_f32')

class Ins:
    __slots__ = ('text', 'op', 'kind', 'defs', 'uses', 'tokdef', 'tokuse', 'target', 'passes', 'srcc', 'srcab',
                 'wide_store', 'comment', 'auto', 'nowait', 'opsel', 'xuse')
    def __init__(self, text, tokdef=None, tokuse=None, comment=None):
        self.text = text.strip(); self.comment = comment
        self.tokdef = tokdef; self.tokuse = tokuse or []
        self.target = None; self.passes = 0; self.srcc = []; self.srcab = []; self.wide_store = []
        self.auto = False; self.nowait = False; self.opsel = False; self.xuse = []
        self.parse()
    def parse(self):
        t = self.text
        if t.endswith(':'):
            self.op = 'label'; self.kind = 'label'; self.defs = []; self.uses = []; self.target = t[:-1]; return
        if t.startswith('.') or t.startswith(';') or t == '':
            self.op = 'dir'; self.kind = 'dir'; self.defs = []; self.uses = []; return
        parts = t.split(None, 1)
        op = parts[0]; self.op = op
        rest = parts[1] if len(parts) > 1 else ''
        ops = [o.strip() for o in rest.split(',')] if rest else []
        mods = ''
        if ops:
            last = ops[-1].split(None, 1)
            ops[-1] = last[0]
            mods = last[1] if len(last) > 1 else ''
        R = [regs_of(o) for o in ops]
        defs = []; uses = []
        base = re.sub(r'_e(32|64)$', '', op)
        if op.startswith('v_mfma'):
            self.kind = 'mfma'; defs = R[0]; self.srcab = R[1] + R[2]; self.srcc = R[3]; uses = R[1] + R[2] + R[3]
            if '32x32x16' in op: self.passes = 8
            elif '16x16x32' in op: self.passes = 4
            else: raise Exception('unknown mfma ' + op)
        elif op.startswith('ds_read') or op.startswith('ds_bpermute') or op.startswith('ds_swizzle'):
            self.kind = 'dsr'; defs = R[0]; uses = sum(R[1:], [])
        elif op.startswith('ds_write'):
            self.kind = 'dsw'; uses = sum(R, [])
        elif op.startswith('buffer_load') or op.startswith('global_load'):
            if ' lds' in (' ' + mods) or 'global_load_lds' in op:
                self.kind = 'dma'; uses = sum(R, []) + ['m0']
            else:
                self.kind = 'vml'; defs = R[0]; uses = sum(R[1:], [])
        elif op.startswith('buffer_store') or op.startswith('global_store'):
            self.kind = 'vms'; uses = sum(R, [])
            data = R[0] if op.startswith('buffer_store') else R[1]
            if 'x4' in op or 'x3' in op: self.wide_store = data
        elif op.startswith('buffer_atomic') or op.startswith('global_atomic'):
            self.kind = 'vms'; uses = sum(R, [])
            if 'sc0' in mods:
                self.kind = 'vml'
                defs = R[0]
                if op.startswith('global_atomic'): uses = sum(R[1:], [])
        elif op.startswith('buffer_inv') or op.startswith('buffer_wbl2'):
            self.kind = 'vms'
        elif op.startswith('s_load') or op.startswith('s_memtime') or op.startswith('s_memrealtime') or op.startswith('s_buffer_load'):
            self.kind = 'smem'; defs = R[0]; uses = sum(R[1:], [])
        elif op == 's_waitcnt':
            self.kind = 'wait'
        elif op == 's_barrier':
            self.kind = 'barrier'
        elif op == 's_nop':
            self.kind = 'nop'
        elif op in ('s_branch',):
            self.kind = 'branch'; self.target = ops[0]
        elif op.startswith('s_cbranch'):
            self.kind = 'cbranch'; self.target = ops[0]
            uses = ['scc'] if 'scc' in op else (['vcc'] if 'vcc' in op else ['exec'])
        elif op == 's_endpgm':
            self.kind = 'end'
        elif op in ('s_setprio', 's_sleep', 's_sethalt'):
            self.kind = 'salu'
        elif op.startswith('s_cmp') or op.startswith('s_bitcmp'):
            self.kind = 'salu'; defs = ['scc']; uses = sum(R, [])
        elif op.startswith('s_'):
            self.kind = 'salu'; defs = R[0] + ['scc']; uses = sum(R[1:], [])
            if op in ('s_mov_b32', 's_mov_b64', 's_movk_i32', 's_mul_i32', 's_mul_hi_u32', 's_cselect_b32', 's_cselect_b64', 's_getreg_b32'):
                defs = R[0]
            if op.startswith('s_cselect') or op in ('s_addc_u32', 's_subb_u32'): uses = uses + ['scc']
            if op in ('s_addk_i32', 's_mulk_i32'): uses = uses + R[0]
            if 'saveexec' in op: defs = defs + ['exec']; uses = uses + ['exec']
        elif op.startswith('v_'):
            self.kind = 'trans' if base in TRANS else 'valu'
            if op.startswith('v_cmp'):
                defs = R[0]; uses = sum(R[1:], [])
            elif op.startswith('v_readfirstlane') or op.startswith('v_readlane'):
                defs = R[0]; uses = sum(R[1:], [])
            elif 'permlane' in op and 'swap' in op:
                defs = R[0] + R[1]; uses = R[0] + R[1]
            elif base in ('v_add_co_u32', 'v_sub_co_u32', 'v_addc_co_u32', 'v_subb_co_u32', 'v_subrev_co_u32'):
                defs = R[0] + R[1]; uses = sum(R[2:], [])
            elif base in ('v_fmac_f32', 'v_dot2c_f32_bf16', 'v_pk_fmac_f16', 'v_writelane_b32'):
                defs = R[0]; uses = sum(R, [])
            else:
                defs = R[0]; uses = sum(R[1:], [])
                if base == 'v_cndmask_b32' and len(ops) == 3: uses = uses + ['vcc']
            if 'dpp' in op or 'row_' in mods or 'quad_perm' in mods: self.op = op + '|dpp';
            if 'op_sel' in mods or 'sdwa' in op or 'dst_sel' in mods: self.opsel = True
        else:
            raise Exception('cannot parse: ' + t)
        self.defs = defs; self.uses = uses

class Prog:
    def __init__(self):
        self.ins = []
    def __call__(self, text, xuse=None, **kw):
        for line in text.split('\n'):
            line = line.split(';;')[0].strip()
            if line:
                i = Ins(line, **kw)
                if xuse: i.xuse = sum([regs_of(x) for x in xuse], [])
                self.ins.append(i)
        return self.ins[-1]
    def add(self, i): self.ins.append(i)
    def label(self, name): self.ins.append(Ins(name + ':'))
    def waittok(self, *toks):
        i = Ins('; waittok ' + ','.join(toks)); i.kind = 'waittok'; i.tokuse = list(toks); self.ins.append(i)
    def comment(self, s): self.ins.append(Ins('; ' + s))

    def build_cfg(self, ins):
        labels = {}
        for k, i in enumerate(ins):
            if i.kind == 'label': labels[i.target] = k
        succ = [[] for _ in ins]
        for k, i in enumerate(ins):
            if i.kind == 'branch': succ[k] = [labels[i.target]]
            elif i.kind == 'cbranch': succ[k] = [labels[i.target]] + ([k + 1] if k + 1 < len(ins) else [])
            elif i.kind == 'end': succ[k] = []
            else: succ[k] = [k + 1] if k + 1 < len(ins) else []
        pred = [[] for _ in ins]
        for k, s in enumerate(succ):
            for t in s: pred[t].append(k)
        return succ, pred

    def insert_waits(self):
        ins = self.ins
        succ, pred = self.build_cfg(ins)
        n = len(ins)
        VMAX, LMAX = 63, 15
        instate = [None] * n
        need = [None] * n
        def merge(a, b):
            if a is None: return b, True
            va, la, sa = a; vb, lb, sb = b
            ch = False
            v = dict(va)
            for r, x in vb.items():
                if r not in v or x < v[r]: v[r] = x; ch = True
            l = dict(la)
            for r, x in lb.items():
                if r not in l or x < l[r]: l[r] = x; ch = True
            s = sa | sb
            if s != sa: ch = True
            return (v, l, s), ch
        def transfer(k, st):
            i = ins[k]; vm, lg, sm = dict(st[0]), dict(st[1]), set(st[2])
            vN = None; lN = None
            if i.kind == 'wait':
                m = re.search(r'vmcnt\((\d+)\)', i.text)
                if m:
                    x = int(m.group(1)); vm = {r: a for r, a in vm.items() if a < x}
                m = re.search(r'lgkmcnt\((\d+)\)', i.text)
                if m:
                    x = int(m.group(1)); lg = {r: a for r, a in lg.items() if a < x}
                    if x == 0: sm = set()
                return (vm, lg, frozenset(sm)), None
            touched = list(i.uses) + list(i.defs) + list(i.xuse) + ['tok:' + t for t in i.tokuse]
            if not i.nowait:
                for r in touched:
                    if r in vm:
                        if i.kind == 'vml' and r in i.defs and r not in i.uses: continue
                        vN = vm[r] if vN is None else min(vN, vm[r])
                    if r in lg:
                        if i.kind == 'dsr' and r in i.defs and r not in i.uses: continue
                        lN = lg[r] if lN is None else min(lN, lg[r])
                    if r in sm: lN = 0
            if lN is not None and sm: lN = 0
            if vN is not None:
                vN = min(vN, VMAX); vm = {r: a for r, a in vm.items() if a < vN}
            if lN is not None:
                lN = min(lN, LMAX); lg = {r: a for r, a in lg.items() if a < lN}
                if lN == 0: sm = set()
            if i.kind in ('vml', 'vms', 'dma'):
                vm = {r: a + 1 for r, a in vm.items()}
                for r in i.defs: vm[r] = 0
                if i.tokdef: vm['tok:' + i.tokdef] = 0
            elif i.kind in ('dsr', 'dsw'):
                lg = {r: a + 1 for r, a in lg.items()}
                for r in i.defs: lg[r] = 0
                if i.tokdef: lg['tok:' + i.tokdef] = 0
            elif i.kind == 'smem':
                for r in i.defs: sm.add(r)
                lg = {r: 0 for r in lg}
            return (vm, lg, frozenset(sm)), (vN, lN)
        def clamp(st):
            vm, lg, sm = st
            return ({r: min(a, VMAX) for r, a in vm.items()}, {r: min(a, LMAX) for r, a in lg.items()}, sm)
        instate[0] = ({}, {}, frozenset())
        work = [0]
        inwork = {0}
        while work:
            k = work.pop(); inwork.discard(k)
            out, w = transfer(k, instate[k])
            out = clamp(out)
            for s in succ[k]:
                m, ch = merge(instate[s], out)
                if ch or instate[s] is None:
                    instate[s] = m
                    if s not in inwork: work.append(s); inwork.add(s)
        new = []
        for k, i in enumerate(ins):
            if instate[k] is not None:
                _, w = transfer(k, instate[k])
                if w and (w[0] is not None or w[1] is not None):
                    p = []
                    if w[0] is not None: p.append(f'vmcnt({w[0]})')
                    if w[1] is not None: p.append(f'lgkmcnt({w[1]})')
                    wi = Ins('s_waitcnt ' + ' '.join(p)); wi.auto = True
                    new.append(wi)
            new.append(i)
        self.ins = new

    def insert_nops(self, verbose=False):
        ins = self.ins
        total = 0
        k = 0
        changed = True
        rounds = 0
        while changed:
            changed = False; rounds += 1
            succ, pred = self.build_cfg(ins)
            out = []
            last_ins = -100
            for k, i in enumerate(ins):
                if i.kind in ('label', 'dir', 'waittok', 'wait', 'nop', 'barrier', 'branch', 'end'):
                    out.append(i); continue
                need = self.hazard_need(ins, pred, k) if k - last_ins > 24 else 0
                if k - last_ins <= 24: changed = changed or (self.hazard_need(ins, pred, k) > 0)
                if need > 0:
                    changed = True; total += need; last_ins = k
                    if verbose: print(f'; nop {need} before: {i.text}', file=sys.stderr)
                    r = need
                    while r > 0:
                        c = min(r, 16); x = Ins(f's_nop {c-1}'); x.auto = True; out.append(x); r -= c
                out.append(i)
            ins = out
            if rounds > 200: raise Exception('nop insertion not converging')
        self.ins = ins
        return total

    def hazard_need(self, ins, pred, k):
        cur = ins[k]
        cu, cd = set(cur.uses), set(cur.defs)
        isvalu = cur.kind in ('valu', 'trans')
        need = 0
        MAXD = 20
        def req(p):
            r = 0
            pd = set(p.defs)
            if p.kind in ('valu', 'trans'):
                vg = {x for x in pd if x[0] in 'va' and x != 'vcc'}
                sg = {x for x in pd if x[0] == 's' or x == 'vcc'}
                if cur.kind == 'mfma' and vg & cu: r = max(r, 2)
                if p.kind == 'trans' and isvalu and vg & cu: r = max(r, 1)
                if p.opsel and isvalu and vg & (cu | cd): r = max(r, 1)
                if isvalu and (cur.op.startswith('v_readfirstlane') or cur.op.startswith('v_readlane')) and vg & cu: r = max(r, 1)
                if isvalu and ('permlane' in cur.op or '|dpp' in cur.op) and vg & cu: r = max(r, 2)
                if isvalu and sg & cu: r = max(r, 2)
                if isvalu and (cur.op.startswith('v_readlane') or cur.op.startswith('v_writelane')) and sg & cu: r = max(r, 4)
                if cur.kind in ('vml', 'vms', 'dma') and sg & cu: r = max(r, 5)
                if 'exec' in pd and (isvalu or cur.kind == 'mfma'): r = max(r, 5)
            if p.kind == 'mfma':
                P = p.passes
                full = {4: 8, 8: 12}[P]; part = {4: 6, 8: 10}[P]; war = {4: 3, 8: 7}[P]
                if cur.kind == 'mfma':
                    if pd & set(cur.srcab): r = max(r, full)
                    if pd & set(cur.srcc):
                        if not (p.defs == cur.srcc and p.passes == cur.passes): r = max(r, part)
                    if pd & cd and p.defs != cur.defs: r = max(r, part)
                else:
                    if isvalu or cur.kind in ('dsr', 'dsw', 'vml', 'vms', 'dma'):
                        if pd & (cu | cd): r = max(r, full)
                    if isvalu and set(p.srcc) & cd: r = max(r, war)
            if p.kind == 'salu' and 'm0' in pd and cur.kind == 'dma': r = max(r, 1)
            if p.kind == 'vms' and p.wide_store:
                if set(p.wide_store) & cd: r = max(r, 2 if isvalu else 1)
            return r
        best = 0
        stack = [(q, 0) for q in pred[k]]
        seen = {}
        while stack:
            q, d = stack.pop()
            if d >= MAXD: continue
            if q in seen and seen[q] <= d: continue
            seen[q] = d
            p = ins[q]
            if p.kind in ('label', 'dir', 'waittok'):
                w = 0
            else:
                r = req(p)
                if r - d > best: best = r - d
                w = 1
                if p.kind == 'nop': w = int(p.text.split()[1]) + 1
            for z in pred[q]: stack.append((z, d + w))
        return best

    def finalize(self, verbose=False):
        self.insert_waits()
        n = self.insert_nops(verbose)
        return n
    def text(self):
        o = []
        for i in self.ins:
            if i.kind == 'label': o.append(i.text)
            else: o.append('    ' + i.text + (f'   ; {i.comment}' if i.comment else ''))
        return '\n'.join(o) + '\n'

def kernel_desc(name, vgprs, agprs=0, sgprs=96, arch=None):
    if agprs:
        acc = (vgprs + 3) // 4 * 4; nf = acc + agprs
    else:
        acc = (vgprs + 3) // 4 * 4; nf = vgprs
    return f'''.section .rodata,"a"
.p2align 6
.amdhsa_kernel {name}
  .amdhsa_next_free_vgpr {nf}
  .amdhsa_next_free_sgpr {sgprs}
  .amdhsa_accum_offset {acc}
  .amdhsa_group_segment_fixed_size 0
  .amdhsa_kernarg_size 104
  .amdhsa_user_sgpr_count 2
  .amdhsa_user_sgpr_kernarg_segment_ptr 1
  .amdhsa_system_sgpr_workgroup_id_x 1
  .amdhsa_float_denorm_mode_32 3
.end_amdhsa_kernel
.text
'''
def kernel_head(name):
    return f'''.text
.globl {name}
.p2align 8
.type {name},@function
{name}:
'''
```

```python
from asm import *
from common import *

S = [16, 32]
NEGM = 48
P = [64, 72]
E = 80
LS = 88
LRUN = 89
VK, VKN, VV = 90, 91, 92
VL16 = 93
VT = 94
T0, T1, T2, T3 = 95, 96, 97, 98
VDMA = 99
AO, AQ, AF = 0, 64, 96
import os
PD = int(os.environ.get('PD', 6))
GRP = int(os.environ.get('GRP', 1))
EXPT = os.environ.get('EXPT', '')
PD0 = 5

KSLOT, VSLOT = 16384, 16384
LDS_K, LDS_V = 0, 49152
NK, NV = 3, 4

sKsl, sVsl = 40, 41
sIt = 42
sKdma, sVdma = 43, 44
sKdl, sVdl = 45, 46
sThr = 47
sSRDK, sSRDV = 48, 52
sTmp = 56
sMaskU = 57

def frag(n): return ar(AF + 4 * (n % 8), 4)

def frag_read(p, gslot):
    n = gslot
    if n >= 32:
        s = n - 32
        assert s < 8
        p(f'ds_read_b128 {frag(n)}, v{VK} offset:{s*1024}')
        return
    per, s = n // 16, n % 16
    if s < 8:
        p(f'ds_read_b128 {frag(n)}, v{VK} offset:{(per*8+s)*1024}')
    else:
        p(f'ds_read_b128 {frag(n)}, v{VV} offset:{(per*8+s-8)*1024}')

def dma_ops(which):
    o = []
    if 'nodma' in EXPT: return [[], [], [], [], []]
    if which == 'K':
        o.append([f's_mov_b32 m0, s{sKdl}'])
        for j in range(4): o.append([(f'buffer_load_dwordx4 v{VDMA}, s[{sSRDK}:{sSRDK+3}], s{sKdma} offen offset:{j*1024} lds', 'K')])
    else:
        o.append([f's_mov_b32 m0, s{sVdl}'])
        for j in range(4): o.append([(f'buffer_load_dwordx4 v{VDMA}, s[{sSRDV}:{sSRDV+3}], s{sVdma} offen offset:{j*1024} lds', 'V')])
    return o

def period(p, par, qk=True, sm=True, pv=True, masked=False, gbase=0, reads=True, rare=None, next_reads=True, hooks=None, tail=None, early=True):
    sn, so = S[par], S[1 - par]
    pn, po = P[1 - par], P[par]
    fill = [[] for _ in range(16)]
    if sm:
        for r in range(2, 16): fill[r - 2].append(f'v_exp_f32 v{E + r % 8}, v{so + r}')
        for r in range(1, 16):
            if r == 1: fill[0].append(f'v_add_f32 v{LS}, v{E}, v{E+1}')
            else: fill[r - 1].append(f'v_add_f32 v{LS}, v{LS}, v{E + r % 8}')
        for k in range(8): fill[2 * k].append(f'v_cvt_pk_bf16_f32 v{pn + k}, v{E + (2*k) % 8}, v{E + (2*k+1) % 8}')
        fill[15].append(f'v_cmp_lt_f32 vcc, s{sThr}, v{LS}')
    if early:
        fill[14].append(f'v_exp_f32 v{E}, v{sn}')
        fill[15].insert(0, f'v_exp_f32 v{E+1}, v{sn+1}')
    hooks = hooks or {}
    def emit(lst):
        for x in lst:
            if isinstance(x, tuple): p(x[0], tokdef=x[1])
            else: p(x)
    for s in range(16):
        g = gbase + s
        if masked and qk and s == 0:
            mask_init(p, par, sMaskU)
        xu = [frag(g + j) for j in range(1, GRP)] if g % GRP == 0 else None
        if s < 8:
            if qk:
                c = vr(sn, 16) if (s > 0 or masked) else vr(NEGM, 16)
                p(f'v_mfma_f32_32x32x16_bf16 {vr(sn,16)}, {frag(g)}, {ar(AQ+4*s,4)}, {c}', xuse=xu)
        else:
            if pv:
                ks, dt = (s - 8) // 4, (s - 8) % 4
                p(f'v_mfma_f32_32x32x16_bf16 {ar(AO+16*dt,16)}, {frag(g)}, {vr(po+4*ks,4)}, {ar(AO+16*dt,16)}', xuse=xu)
        emit(hooks.get(g, {}).get('pre', []))
        if reads and g % GRP == 0 and 'noread' not in EXPT:
            for j in range(GRP):
                ng = g + PD + j
                if ng < 32:
                    ok = reads(ng // 16, ng % 16) if callable(reads) else True
                else:
                    ok = next_reads
                if ok: frag_read(p, ng)
        for f in fill[s]:
            if 'noadd' in EXPT and f.startswith('v_add'): continue
            if 'noexp' in EXPT and f.startswith('v_exp'): continue
            if 'nocvt' in EXPT and f.startswith('v_cvt'): continue
            p(f)
        emit(hooks.get(g, {}).get('post', []))
    if sm:
        if rare: p(f's_cbranch_vccnz {rare}')
        if rare: p.label(rare + '_ret')
        p(f'v_add_f32 v{LRUN}, v{LRUN}, v{LS}')

BIG = 2.0 ** 90

def mask_init2(p, sb):
    for r in range(16):
        c = (r >> 2) * 8 + (r & 3)
        if c == 0: p(f'v_min_f32 v{S[sb]+r}, v{VT}, v{NEGM+r}')
        else:
            p(f'v_add_f32 v{S[sb]+r}, 0x{f2u(-c*BIG):08x}, v{VT}')
            p(f'v_min_f32 v{S[sb]+r}, v{S[sb]+r}, v{NEGM+r}')
    p(f'v_add_f32 v{VT}, 0x{f2u(-32*BIG):08x}, v{VT}')
def mask_init(p, sb, _u): mask_init2(p, sb)

def rowmax(p, sb, dst):
    b = S[sb]
    p(f'v_max3_f32 v{dst}, v{b}, v{b+1}, v{b+2}')
    for r in range(3, 15, 2): p(f'v_max3_f32 v{dst}, v{dst}, v{b+r}, v{b+r+1}')
    p(f'v_max_f32 v{dst}, v{dst}, v{b+15}')
    p(f'v_mov_b32 v{T3}, v{dst}')
    p(f'v_permlane32_swap_b32 v{dst}, v{T3}')
    p(f'v_max_f32 v{dst}, v{dst}, v{T3}')

def sm_plain(p, sb, pb):
    so = S[sb]; pn = P[pb]
    for r in range(0, 16, 2):
        p(f'v_exp_f32 v{E}, v{so+r}')
        p(f'v_exp_f32 v{E+1}, v{so+r+1}')
        if r == 0: p(f'v_add_f32 v{LS}, v{E}, v{E+1}')
        else:
            p(f'v_add_f32 v{LS}, v{LS}, v{E}')
            p(f'v_add_f32 v{LS}, v{LS}, v{E+1}')
        p(f'v_cvt_pk_bf16_f32 v{pn + r//2}, v{E}, v{E+1}')

def rare_path(p, label, par):
    p.label(label)
    rowmax(p, 1 - par, T1)
    p(f'v_max_f32 v{T1}, 0, v{T1}')
    p(f'v_exp_f32 v{T2}, -v{T1}')
    for r in range(16):
        p(f'v_sub_f32 v{S[1-par]+r}, v{S[1-par]+r}, v{T1}')
        p(f'v_sub_f32 v{S[par]+r}, v{S[par]+r}, v{T1}')
        p(f'v_sub_f32 v{NEGM+r}, v{NEGM+r}, v{T1}')
    p(f'v_mul_f32 v{LRUN}, v{LRUN}, v{T2}')
    for r in range(64):
        p(f'v_accvgpr_read_b32 v{E + r % 4}, a{AO+r}')
        p(f'v_mul_f32 v{E + r % 4}, v{E + r % 4}, v{T2}')
        p(f'v_accvgpr_write_b32 a{AO+r}, v{E + r % 4}')
    sm_plain(p, 1 - par, 1 - par)
    p(f'v_exp_f32 v{E}, v{S[par]}')
    p(f'v_exp_f32 v{E+1}, v{S[par]+1}')
    p(f's_branch {label}_ret')

def _unused_iter_head(p, loader, wait):
    if loader: p(f's_waitcnt vmcnt({wait})')
    p('s_barrier')

def adv_k():
    return [f's_add_u32 s{sKsl}, s{sKsl}, {KSLOT}', f's_cmp_eq_u32 s{sKsl}, {NK*KSLOT}', f's_cselect_b32 s{sKsl}, 0, s{sKsl}',
            f'v_add_u32 v{VK}, s{sKsl}, v{VL16}']
def adv_v():
    return [f's_add_u32 s{sVsl}, s{sVsl}, {VSLOT}', f's_cmp_eq_u32 s{sVsl}, {LDS_V + NV*VSLOT}', f's_cselect_b32 s{sVsl}, {LDS_V}, s{sVsl}',
            f'v_add_u32 v{VV}, s{sVsl}, v{VL16}']
def dma_adv():
    return [f's_add_u32 s{sKt}, s{sKt}, 1',
    f's_add_u32 s{sKbase}, s{sKbase}, 16384',
    f's_cmp_lt_u32 s{sKt}, s{sNT}',
    f's_cselect_b32 s{sKdma}, s{sKbase}, s{sOOB}',
    f's_add_u32 s{sVbase}, s{sVbase}, 16384',
    f's_cmp_le_u32 s{sKt}, s{sNT}',
    f's_cselect_b32 s{sVdma}, s{sVbase}, s{sOOB}',
    f's_add_u32 s{sKdl}, s{sKdl}, {KSLOT}',
    f's_cmp_ge_u32 s{sKdl}, {NK*KSLOT}',
    f's_cselect_b32 s{sTmp}, {NK*KSLOT}, 0',
    f's_sub_u32 s{sKdl}, s{sKdl}, s{sTmp}',
    f's_add_u32 s{sVdl}, s{sVdl}, {VSLOT}',
    f's_cmp_ge_u32 s{sVdl}, {LDS_V + NV*VSLOT}',
    f's_cselect_b32 s{sTmp}, {NV*VSLOT}, 0',
    f's_sub_u32 s{sVdl}, s{sVdl}, s{sTmp}']
def dma_advance(p):
    for x in dma_adv(): p(x)
sKt, sNT, sKbase, sVbase, sOOB = 58, 59, 60, 61, 62
sNTw, sR32, sH, sCtxOff, sWave = 63, 64, 65, 66, 67
sSRDC = 68

def dma_group(p):
    for grp in dma_ops('K') + dma_ops('V'):
        for x in grp:
            if isinstance(x, tuple): p(x[0])
            else: p(x)

def iteration(p, loader, masked=False, final=False, rare=None, loop=None):
    BS = 32 - PD
    hooks = {g: {'pre': [], 'post': []} for g in range(32)}
    if loader:
        d = dma_ops('K') + dma_ops('V')
        sl = [1, 3, 5, 7, 9, 11, 13, 15, 17, 19]
        for g, grp in zip(sl, d): hooks[g]['post'] += grp
        adv = dma_adv()
        for n, x in enumerate(adv): hooks[20 + n // 3]['post'].append(x)
    kadv = adv_k(); vadv = adv_v()
    hooks[24 - PD + 1]['post'] += kadv[:3]; hooks[24 - PD + 2]['post'] += kadv[3:]
    hooks[BS]['pre'] += ([f's_waitcnt vmcnt(8)'] if loader else []) + ['s_barrier']
    hooks[BS + 1]['post'] += vadv[:3]; hooks[BS + 2]['post'] += vadv[3:]
    if loop:
        hooks[30]['post'] += [f's_sub_u32 s{sIt}, s{sIt}, 1']
        hooks[31]['post'] += [f's_cmp_lg_u32 s{sIt}, 0']
    if final:
        rd = lambda per, s: s >= 8
        period(p, 0, qk=False, sm=True, pv=True, gbase=0, reads=rd, rare=rare and rare + 'a', hooks=hooks, early=False)
        period(p, 1, qk=False, sm=False, pv=True, gbase=16, reads=rd, next_reads=False, hooks=hooks, early=False)
    else:
        period(p, 0, masked=masked, gbase=0, rare=rare and rare + 'a', hooks=hooks)
        period(p, 1, masked=masked, gbase=16, rare=rare and rare + 'b', hooks=hooks)
    if loop: p(f's_cbranch_scc1 {loop}')

def attention(p, loader, pre, tokwait=False):
    L = pre
    for r in range(64): p(f'v_accvgpr_write_b32 a{AO+r}, 0')
    for r in range(16): p(f'v_mov_b32 v{NEGM+r}, 0')
    if loader:
        if tokwait: p.waittok('K0')
        else: p('s_waitcnt vmcnt(16)')
    p('s_barrier')
    mask_init2(p, 0)
    for s in range(8): p(f'ds_read_b128 {frag(s)}, v{VK} offset:{s*1024}')
    for s in range(8): p(f'v_mfma_f32_32x32x16_bf16 {vr(S[0],16)}, {frag(s)}, {ar(AQ+4*s,4)}, {vr(S[0],16)}')
    for s in range(8): p(f'ds_read_b128 {frag(s)}, v{VK} offset:{(8+s)*1024}')
    rowmax(p, 0, T1)
    for r in range(16):
        p(f'v_sub_f32 v{S[0]+r}, v{S[0]+r}, v{T1}')
        p(f'v_sub_f32 v{NEGM+r}, 0, v{T1}')
    mask_init2(p, 1)
    for s in range(8): p(f'v_mfma_f32_32x32x16_bf16 {vr(S[1],16)}, {frag(s)}, {ar(AQ+4*s,4)}, {vr(S[1],16)}')
    for x in adv_k(): p(x)
    if loader:
        if tokwait: p.waittok('K1', 'V0')
        else: p('s_waitcnt vmcnt(8)')
    p('s_barrier')
    for s in range(PD): p(f'ds_read_b128 {frag(s)}, v{VK} offset:{s*1024}')
    sm_plain(p, 0, 0)
    p(f'v_mov_b32 v{LRUN}, v{LS}')
    p(f'v_exp_f32 v{E}, v{S[1]}')
    p(f'v_exp_f32 v{E+1}, v{S[1]+1}')
    p(f's_sub_i32 s{sIt}, s{sNTw}, 3')
    p(f's_cmp_le_i32 s{sIt}, 0')
    p(f's_cbranch_scc1 {L}_masked_setup')
    p.label(f'{L}_loop')
    iteration(p, loader, rare=f'{L}_r0', loop=f'{L}_loop')
    p.label(f'{L}_masked_setup')
    p(f's_sub_i32 s{sTmp}, s{sNTw}, 3')
    p(f's_max_i32 s{sTmp}, s{sTmp}, 0')
    p(f's_sub_i32 s{sIt}, s{sNTw}, s{sTmp}')
    p(f's_sub_i32 s{sIt}, s{sIt}, 1')
    p(f's_lshl_b32 s{sTmp}, s{sTmp}, 6')
    p(f'v_cvt_f32_u32 v{T0}, s{sTmp}')
    p(f'v_mul_f32 v{T0}, 0x{f2u(BIG):08x}, v{T0}')
    p(f'v_sub_f32 v{VT}, v{VT}, v{T0}')
    p.label(f'{L}_mloop')
    iteration(p, loader, masked=True, rare=f'{L}_r1', loop=f'{L}_mloop')
    iteration(p, loader, final=True, rare=f'{L}_r2')

def epilogue(p):
    p(f'v_mov_b32 v{T1}, v{LRUN}')
    p(f'v_mov_b32 v{T2}, v{LRUN}')
    p(f'v_permlane32_swap_b32 v{T1}, v{T2}')
    p(f'v_add_f32 v{T1}, v{T1}, v{T2}')
    p(f'v_rcp_f32 v{T1}, v{T1}')
    for dt in range(4):
        for ks in range(2):
            b = S[ks]
            for j in range(8):
                p(f'v_accvgpr_read_b32 v{b+j}, a{AO+16*dt+8*ks+j}')
            for j in range(8):
                p(f'v_mul_f32 v{b+j}, v{b+j}, v{T1}')
            for j in range(4):
                p(f'v_cvt_pk_bf16_f32 v{b+8+j}, v{b+2*j}, v{b+2*j+1}')
            p(f'buffer_store_dwordx4 {vr(b+8,4)}, v{VL16}, s[{sSRDC}:{sSRDC+3}], s{sCtxOff} offen offset:{(dt*2+ks)*1024 % 4096}')
            if (dt*2+ks) % 4 == 3: p(f's_add_u32 s{sCtxOff}, s{sCtxOff}, 4096')

def rare_paths(p, L):
    for nm in ('r0', 'r1'):
        rare_path(p, f'{L}_{nm}a', 0)
        rare_path(p, f'{L}_{nm}b', 1)
    rare_path(p, f'{L}_r2a', 0)
```

```python
from asm import *
import struct
def f2u(x): return struct.unpack('<I', struct.pack('<f', x))[0]
def vr(b, n): return f'v[{b}:{b+n-1}]'
def ar(b, n): return f'a[{b}:{b+n-1}]'
WS_KF  = 0
WS_VF  = 16 << 20
WS_XN  = 32 << 20
WS_GU  = 36 << 20
WS_AF  = 40 << 20
WS_PT  = 64 << 20
WS_TS  = 96 << 20
NKS = 342
KA = dict(x=0, ckv=8, wq=16, wuk=24, wuv=32, wo=40, bx=48, wg=56, wu=64, wd=72, out=80, dbg=88, ws=96)
def srd(p, s, base_pair, off, nbytes):
    if off:
        p(f's_add_u32 s{s}, s{base_pair}, {off}')
        p(f's_addc_u32 s{s+1}, s{base_pair+1}, 0')
        p(f's_and_b32 s{s+1}, s{s+1}, 0xffff')
    else:
        if s != base_pair: p(f's_mov_b32 s{s}, s{base_pair}')
        p(f's_and_b32 s{s+1}, s{base_pair+1}, 0xffff')
    p(f's_mov_b32 s{s+2}, {nbytes}')
    p(f's_mov_b32 s{s+3}, 0x20000')
STAMPS = False
def stamp_init(p):
    if not STAMPS: return
    p('s_memtime s[90:91]'); p('s_memrealtime s[88:89]')
def stamp(p, idx, sw, vt=None, kern=0):
    if not STAMPS: return
    p('s_memtime s[92:93]'); p('s_waitcnt lgkmcnt(0)')
    p('s_sub_u32 s92, s92, s90'); p(f'v_mov_b32 v{vt}, s92')
    p(f's_lshl_b32 s94, s2, 3'); p(f's_add_u32 s94, s94, s{sw}'); p('s_lshl_b32 s94, s94, 5'); p(f's_add_u32 s94, s94, {idx*4 + kern*65536}')
    p(f'v_mov_b32 v{vt+1}, 0'); p(f'buffer_store_dword v{vt}, v{vt+1}, s[84:87], s94 offen')
def stamp_real(p, idx, sw, vt, kern=0):
    if not STAMPS: return
    p('s_memrealtime s[92:93]'); p('s_waitcnt lgkmcnt(0)')
    p('s_sub_u32 s92, s92, s88'); p(f'v_mov_b32 v{vt}, s92')
    p(f's_lshl_b32 s94, s2, 3'); p(f's_add_u32 s94, s94, s{sw}'); p('s_lshl_b32 s94, s94, 5'); p(f's_add_u32 s94, s94, {idx*4 + kern*65536}')
    p(f'v_mov_b32 v{vt+1}, 0'); p(f'buffer_store_dword v{vt}, v{vt+1}, s[84:87], s94 offen')

def wave_sum(p, v, t):
    for m in (0x041F, 0x081F, 0x101F, 0x201F, 0x401F):
        p(f'ds_swizzle_b32 v{t}, v{v} offset:0x{m:04X}')
        p(f'v_add_f32 v{v}, v{v}, v{t}')
    p(f'v_mov_b32 v{t}, v{v}')
    p(f'v_permlane32_swap_b32 v{v}, v{t}')
    p(f'v_add_f32 v{v}, v{v}, v{t}')

def wtr_addr_setup(p, vW, vl, t0, t1, permk):
    p(f'v_lshrrev_b32 v{t0}, 5, v{vl}')
    p(f'v_lshlrev_b32 v{t0}, {2 if permk else 3}, v{t0}')
    p(f'v_bfe_u32 v{t1}, v{vl}, 2, 2')
    p(f'v_add_u32 v{t0}, v{t0}, v{t1}')
    p(f'v_lshlrev_b32 v{t0}, 8, v{t0}')
    p(f'v_bfe_u32 v{vW}, v{vl}, 4, 1'); p(f'v_lshlrev_b32 v{vW}, 5, v{vW}')
    p(f'v_add_u32 v{t0}, v{t0}, v{vW}')
    p(f'v_and_b32 v{vW}, 3, v{vl}'); p(f'v_lshlrev_b32 v{vW}, 3, v{vW}')
    p(f'v_add_u32 v{t0}, v{t0}, v{vW}')
    for n in range(4):
        p(f'v_xor_b32 v{vW+n}, {n}, v{t1}')
        p(f'v_lshlrev_b32 v{vW+n}, 6, v{vW+n}')
        p(f'v_add_u32 v{vW+n}, v{vW+n}, v{t0}')
def wdma_addr_setup(p, vD, vl, t0, t1, rowstride):
    p(f'v_lshrrev_b32 v{t0}, 4, v{vl}')
    p(f'v_bfe_u32 v{t1}, v{vl}, 2, 2')
    p(f'v_xor_b32 v{t1}, v{t1}, v{t0}')
    p(f'v_lshlrev_b32 v{t1}, 6, v{t1}')
    p(f'v_and_b32 v{vD}, 3, v{vl}'); p(f'v_lshlrev_b32 v{vD}, 4, v{vD}')
    p(f'v_add_u32 v{t1}, v{t1}, v{vD}')
    p(f'v_mul_u32_u24 v{t0}, {rowstride}, v{t0}')
    p(f'v_add_u32 v{vD}, v{t0}, v{t1}')
    p(f'v_add_u32 v{vD+1}, {4*rowstride-1024}, v{vD}')
```

```python
from common import *
NAME = 'kvproj_kernel'
LDS_W, LDS_C = 0, 65536
def build():
    p = Prog()
    sW, sH, sRB, sT = 20, 21, 22, 23
    sWoff, sCoff, sCl, sOut = 24, 25, 26, 27
    SX, SC, SUK, SUV, SWS, SG, SU = 28, 32, 36, 40, 44, 48, 52
    vL, vL16 = 1, 2
    vW, vWD, vCD, vCR = 4, 8, 10, 14
    t0, t1, t2, t3 = 18, 19, 20, 21
    WF = 32; ACC = 64
    p('s_cmp_ge_u32 s2, 256'); p(f's_cbranch_scc1 K1_end')
    p('s_load_dwordx4 s[4:7], s[0:1], 0')
    p('s_load_dwordx4 s[8:11], s[0:1], 24')
    p('s_load_dwordx4 s[12:15], s[0:1], 56')
    p('s_load_dwordx2 s[16:17], s[0:1], 96')
    stamp_init(p)
    p(f'v_lshrrev_b32 v{t0}, 6, v0'); p(f'v_readfirstlane_b32 s{sW}, v{t0}')
    p(f'v_and_b32 v{vL}, 63, v0'); p(f'v_lshlrev_b32 v{vL16}, 4, v{vL}')
    p('s_and_b32 s18, s2, 7'); p('s_lshl_b32 s18, s18, 2'); p('s_lshr_b32 s19, s2, 3'); p('s_and_b32 s19, s19, 3')
    p(f's_add_u32 s{sH}, s18, s19'); p(f's_lshr_b32 s{sRB}, s2, 5')
    wtr_addr_setup(p, vW, vL, t0, t1, False)
    wdma_addr_setup(p, vWD, vL, t0, t1, 8192)
    p(f'v_lshrrev_b32 v{t0}, 3, v{vL}')
    p(f'v_lshrrev_b32 v{t1}, 4, v{vL}')
    for t in range(4):
        p(f'v_add_u32 v{t2}, {4*(t&1)}, v{t1}')
        p(f'v_and_b32 v{t3}, 7, v{vL}'); p(f'v_xor_b32 v{t2}, v{t2}, v{t3}'); p(f'v_lshlrev_b32 v{t2}, 4, v{t2}')
        p(f'v_lshlrev_b32 v{t3}, 10, v{t0}'); p(f'v_add_u32 v{t2}, v{t2}, v{t3}')
        p(f'v_add_u32 v{vCD+t}, {t*(8192-1024)}, v{t2}')
    p(f'v_and_b32 v{t0}, 31, v{vL}'); p(f'v_bfe_u32 v{t1}, v{vL}, 1, 3'); p(f'v_lshrrev_b32 v{t2}, 5, v{vL}')
    p(f's_mul_i32 s18, s{sW}, 12288'); p(f's_add_u32 s{sCl}, s18, {LDS_C}')
    for s in range(4):
        p(f'v_add_u32 v{t3}, {2*s}, v{t2}'); p(f'v_xor_b32 v{t3}, v{t3}, v{t1}'); p(f'v_lshlrev_b32 v{t3}, 4, v{t3}')
        p(f'v_lshl_add_u32 v{t3}, v{t0}, 7, v{t3}'); p(f'v_add_u32 v{vCR+s}, s{sCl}, v{t3}')
    p('s_waitcnt lgkmcnt(0)')
    srd(p, SX, 4, 0, 2048*512*2); srd(p, SC, 6, 0, 2048*512*2); srd(p, SUK, 8, 0, 512*4096*2); srd(p, SUV, 10, 0, 512*4096*2)
    srd(p, SG, 12, 0, 512*1376*2); srd(p, SU, 14, 0, 512*1376*2); srd(p, SWS, 16, 0, 40 << 20)
    if STAMPS: srd(p, 84, 16, WS_TS, 1 << 20)
    p(f's_lshl_b32 s18, s{sH}, 8'); p(f's_lshl_b32 s19, s{sW}, 16'); p(f's_add_u32 s{sWoff}, s18, s19')
    p(f's_lshl_b32 s18, s{sRB}, 18'); p(f's_lshl_b32 s19, s{sW}, 15'); p(f's_add_u32 s{sCoff}, s18, s19')
    p(f's_lshl_b32 s{sT}, s{sW}, 11')
    def dmaW(g):
        srdn = SUK if g < 8 else SUV
        p(f's_add_u32 m0, s{sT}, {LDS_W + (g % 4) * 16384}')
        p(f's_add_u32 s18, s{sWoff}, {(g % 8) * 64 * 8192}')
        for tt in range(2): p(f'buffer_load_dwordx4 v{vWD+tt}, s[{srdn}:{srdn+3}], s18 offen offset:{tt*1024} lds', tokdef=f'W{g}')
    def dmaC(c):
        p(f's_add_u32 m0, s{sCl}, {(c % 3) * 4096}')
        p(f's_add_u32 s18, s{sCoff}, {c * 128}')
        for t in range(4): p(f'buffer_load_dwordx4 v{vCD+t}, s[{SC}:{SC+3}], s18 offen offset:{t*1024} lds', tokdef=f'C{c}')
    for c in range(3): dmaC(c); dmaW(c)
    X = 64
    p(f's_lshl_b32 s18, s2, 3'); p(f's_add_u32 s18, s18, s{sW}')
    p(f's_lshl_b32 s19, s18, 10')
    p(f'buffer_load_dwordx4 {vr(X,4)}, v{vL16}, s[{SX}:{SX+3}], s19 offen')
    G = 96
    p(f'v_mul_u32_u24 v{G}, 10923, v0'); p(f'v_lshrrev_b32 v{G}, 16, v{G}')
    p(f'v_mul_u32_u24 v{G+1}, 6, v{G}'); p(f'v_sub_u32 v{G+1}, v0, v{G+1}')
    p('s_lshr_b32 s56, s2, 3')
    p('s_and_b32 s57, s2, 7'); p('s_lshl_b32 s57, s57, 6')
    p('s_mul_i32 s58, s56, 3'); p('s_lshl_b32 s59, s56, 1'); p('s_add_u32 s59, s59, 22'); p('s_cmp_lt_u32 s56, 22'); p('s_cselect_b32 s58, s58, s59')
    p(f'v_add_u32 v{G+2}, s57, v{G}')
    p('s_movk_i32 s59, 2752'); p(f'v_mul_lo_u32 v{G+3}, v{G+2}, s59')
    p(f'v_lshrrev_b32 v{G+4}, 1, v{G+1}'); p(f'v_add_u32 v{G+4}, s58, v{G+4}'); p(f'v_lshlrev_b32 v{G+4}, 5, v{G+4}')
    p(f'v_and_b32 v{G+5}, 1, v{G+1}'); p(f'v_lshlrev_b32 v{G+5}, 4, v{G+5}')
    p(f'v_add3_u32 v{G+3}, v{G+3}, v{G+4}, v{G+5}')
    p(f's_lshl_b32 s59, s56, 9'); p(f'v_add_u32 v{G+2}, s59, v{G+2}'); p(f'v_mul_u32_u24 v{G+2}, 192, v{G+2}')
    p(f'v_lshrrev_b32 v{G+4}, 1, v{G+1}'); p(f'v_lshlrev_b32 v{G+4}, 6, v{G+4}')
    p(f'v_add3_u32 v{G+2}, v{G+2}, v{G+4}, v{G+5}'); p(f'v_add_u32 v{G+2}, {WS_GU}, v{G+2}')
    p(f'v_mov_b32 v{G+6}, 0x7fffffff')
    p(f'v_cmp_gt_u32 vcc, 384, v0'); p(f'v_cndmask_b32 v{G+3}, v{G+6}, v{G+3}, vcc'); p(f'v_cndmask_b32 v{G+2}, v{G+6}, v{G+2}, vcc')
    p(f'buffer_load_dwordx4 {vr(G+8,4)}, v{G+3}, s[{SG}:{SG+3}], 0 offen')
    p(f'buffer_load_dwordx4 {vr(G+12,4)}, v{G+3}, s[{SU}:{SU+3}], 0 offen')
    F = 72
    for j in range(4):
        p(f'v_lshlrev_b32 v{F+2*j}, 16, v{X+j}'); p(f'v_and_b32 v{F+2*j+1}, 0xffff0000, v{X+j}')
    p(f'v_add_f32 v{t0}, v{F}, v{F+1}')
    for j in range(2, 8): p(f'v_add_f32 v{t0}, v{t0}, v{F+j}')
    wave_sum(p, t0, t1)
    p(f'v_mul_f32 v{t0}, 0x{f2u(1/512):08x}, v{t0}')
    for j in range(8): p(f'v_sub_f32 v{F+j}, v{F+j}, v{t0}')
    p(f'v_mul_f32 v{t2}, v{F}, v{F}')
    for j in range(1, 8): p(f'v_fmac_f32 v{t2}, v{F+j}, v{F+j}')
    wave_sum(p, t2, t1)
    p(f'v_mov_b32 v{t3}, 0x{f2u(1e-5):08x}')
    p(f'v_fmac_f32 v{t3}, 0x{f2u(1/512):08x}, v{t2}')
    p(f'v_rsq_f32 v{t3}, v{t3}')
    for j in range(8): p(f'v_mul_f32 v{F+j}, v{F+j}, v{t3}')
    for j in range(4): p(f'v_cvt_pk_bf16_f32 v{X+j}, v{F+2*j}, v{F+2*j+1}')
    p(f'v_lshrrev_b32 v{t0}, 1, v{vL}'); p(f'v_lshlrev_b32 v{t0}, 10, v{t0}')
    p(f'v_and_b32 v{t1}, 1, v{vL}'); p(f'v_lshlrev_b32 v{t1}, 9, v{t1}'); p(f'v_add_u32 v{t0}, v{t0}, v{t1}')
    p('s_lshr_b32 s19, s18, 5'); p('s_lshl_b32 s19, s19, 15'); p('s_and_b32 s18, s18, 31'); p('s_lshl_b32 s18, s18, 4')
    p('s_add_u32 s19, s19, s18'); p(f's_add_u32 s19, s19, {WS_XN}')
    p(f'buffer_store_dwordx4 {vr(X,4)}, v{t0}, s[{SWS}:{SWS+3}], s19 offen')
    p(f'buffer_store_dwordx4 {vr(G+8,4)}, v{G+2}, s[{SWS}:{SWS+3}], 0 offen')
    p(f'buffer_store_dwordx4 {vr(G+12,4)}, v{G+2}, s[{SWS}:{SWS+3}], 0 offen offset:32')
    stamp(p, 0, sW, t0)
    p(f's_lshl_b32 s18, s{sH}, 6'); p(f's_lshl_b32 s19, s{sRB}, 3'); p('s_add_u32 s18, s18, s19'); p(f's_add_u32 s18, s18, s{sW}')
    p(f's_lshl_b32 s{sOut}, s18, 13')
    PDW = 4
    def wread(m):
        g, r = divmod(m, 16); s, n = divmod(r, 4)
        b = WF + 4 * (m % 8); off = LDS_W + (g % 4) * 16384 + s * 4096
        p(f'ds_read_b64_tr_b16 {vr(b,2)}, v{vW+n} offset:{off}')
        p(f'ds_read_b64_tr_b16 {vr(b+2,2)}, v{vW+n} offset:{off+1024}')
    def cread(c):
        for s in range(4): p(f'ds_read_b128 {ar(4*(4*c+s),4)}, v{vCR+s} offset:{(c % 3) * 4096}')
    def epi(part, n):
        a = ACC + 16 * n
        for j in range(8): p(f'v_cvt_pk_bf16_f32 v{a+j}, v{a+2*j}, v{a+2*j+1}')
        if part == 0:
            o0, o1 = (2*n) * 1024, (2*n+1) * 1024
        else:
            o0, o1 = n * 1024, (4 + n) * 1024
        base = WS_KF if part == 0 else WS_VF
        for half, o in ((0, o0), (1, o1)):
            p(f's_add_u32 s18, s{sOut}, {base + (o & ~4095)}')
            p(f'buffer_store_dwordx4 {vr(a+4*half,4)}, v{vL16}, s[{SWS}:{SWS+3}], s18 offen offset:{o & 4095}')
    p.waittok('W0', 'C0'); p('s_barrier')
    cread(0)
    for m in range(PDW): wread(m)
    for g in range(16):
        part, c = divmod(g, 8)
        for r in range(16):
            m = g * 16 + r; s, n = divmod(r, 4)
            a = vr(ACC + 16 * n, 16); wf = vr(WF + 4 * (m % 8), 4); cf = ar(4 * (4 * c + s), 4)
            cin = a if not (c == 0 and s == 0) else '0'
            if part == 0: p(f'v_mfma_f32_32x32x16_bf16 {a}, {wf}, {cf}, {cin}')
            else: p(f'v_mfma_f32_32x32x16_bf16 {a}, {cf}, {wf}, {cin}')
            if r == 16 - PDW - 1 and g < 15:
                toks = [f'W{g+1}'] + ([f'C{g+1}'] if g + 1 < 8 else [])
                p.waittok(*toks); p('s_barrier')
                if g + 1 < 8: cread(g + 1)
            if m + PDW < 256: wread(m + PDW)
            if r == 16 - PDW and g < 15:
                if g + 3 < 16: dmaW(g + 3)
            if r == 15 and g + 3 < 8:
                dmaC(g + 3)
        if c == 7:
            for n in range(4): epi(part, n)
    stamp(p, 1, sW, t0); stamp_real(p, 2, sW, t0)
    p.label('K1_end')
    p('s_endpgm')
    n = p.finalize()
    return NAME, p, (128, 128), 512, 163840, 256
if __name__ == '__main__':
    name, p, regs, blk, lds, grid = build()
    print(len(p.ins))
```

```python
from common import *
import common
from attn import *
NAME = 'attn_kernel'
QSCALE = 128 ** -0.5 * 1.4426950408889634
def build():
    p = Prog()
    SWQ, SXN, SGU = 72, 76, 80
    sWoff, sT, sG0, sGoff, sGl = 24, 25, 26, 27, 28
    vL, vW, vWD, vG = 1, 4, 8, 10
    t0, t1, t2, t3 = 12, 13, 14, 15
    WF, ACC = 32, 64
    p('s_cmp_ge_u32 s2, 256'); p('s_cbranch_scc1 K2_end')
    p('s_load_dwordx2 s[4:5], s[0:1], 96'); p('s_load_dwordx2 s[6:7], s[0:1], 16')
    stamp_init(p)
    p(f'v_lshrrev_b32 v{t0}, 6, v0'); p(f'v_readfirstlane_b32 s{sWave}, v{t0}')
    p(f'v_and_b32 v{vL}, 63, v0'); p(f'v_lshlrev_b32 v2, 4, v{vL}')
    p('s_and_b32 s10, s2, 7'); p('s_lshl_b32 s10, s10, 2'); p('s_lshr_b32 s11, s2, 3'); p('s_and_b32 s11, s11, 3')
    p(f's_add_u32 s{sH}, s10, s11'); p('s_lshr_b32 s8, s2, 5')
    wtr_addr_setup(p, vW, vL, t0, t1, False)
    wdma_addr_setup(p, vWD, vL, t0, t1, 8192)
    p(f'v_lshrrev_b32 v{t0}, 5, v{vL}'); p(f'v_lshlrev_b32 v{t0}, 3, v{t0}'); p(f'v_bfe_u32 v{t1}, v{vL}, 2, 2'); p(f'v_add_u32 v{t0}, v{t0}, v{t1}')
    p(f'v_mul_u32_u24 v{t0}, 192, v{t0}')
    p(f'v_bfe_u32 v{t1}, v{vL}, 4, 1'); p(f'v_lshlrev_b32 v{t1}, 5, v{t1}'); p(f'v_add_u32 v{t0}, v{t0}, v{t1}')
    p(f'v_and_b32 v{t1}, 3, v{vL}'); p(f'v_lshlrev_b32 v{t1}, 3, v{t1}'); p(f'v_add_u32 v{t0}, v{t0}, v{t1}')
    p(f'v_add_u32 v{vG}, 65536, v{t0}'); p(f'v_add_u32 v{vG+1}, {65536+49152}, v{t0}')
    p('s_waitcnt lgkmcnt(0)')
    srd(p, sSRDK, 4, WS_KF, 16 << 20); srd(p, sSRDV, 4, WS_VF, 16 << 20); srd(p, sSRDC, 4, WS_AF, 64 * NKS * 1024)
    srd(p, SXN, 4, WS_XN, 2 << 20); srd(p, SGU, 4, WS_GU, 32 * 512 * 192); srd(p, SWQ, 6, 0, 512 * 4096 * 2)
    if common.STAMPS: srd(p, 84, 4, WS_TS, 1 << 20)
    p('s_sub_u32 s9, 15, s8'); p(f's_cmp_lt_u32 s{sWave}, 4'); p('s_cselect_b32 s10, s8, s9')
    p(f's_and_b32 s11, s{sWave}, 3'); p('s_lshl_b32 s12, s10, 2'); p(f's_add_u32 s{sR32}, s12, s11')
    p('s_lshl_b32 s12, s10, 1'); p(f's_add_u32 s{sNTw}, s12, 2')
    p('s_lshl_b32 s12, s9, 1'); p(f's_add_u32 s{sNT}, s12, 2')
    p(f's_mov_b32 s{sThr}, 0x46800000'); p(f's_mov_b32 s{sOOB}, 0x80000000')
    p(f's_lshl_b32 s12, s{sH}, 19'); p('s_lshl_b32 s13, s11, 12'); p('s_add_u32 s12, s12, s13')
    p(f's_mov_b32 s{sKbase}, s12'); p(f's_mov_b32 s{sVbase}, s12')
    p(f's_mov_b32 s{sKdl}, s13'); p(f's_add_u32 s{sVdl}, s13, {LDS_V}')
    p(f's_lshl_b32 s12, s{sH}, 8'); p(f's_lshl_b32 s13, s{sWave}, 16'); p(f's_add_u32 s{sWoff}, s12, s13')
    p(f's_lshl_b32 s{sT}, s{sWave}, 11')
    p(f's_mul_i32 s12, s{sH}, {512*192}'); p(f's_mul_i32 s13, s{sWave}, 3072'); p(f's_add_u32 s{sGoff}, s12, s13'); p(f's_add_u32 s{sGl}, s13, 65536')
    p(f's_mul_i32 s12, s{sH}, 3'); p(f's_lshl_b32 s13, s{sH}, 1'); p('s_add_u32 s13, s13, 22'); p(f's_cmp_lt_u32 s{sH}, 22'); p(f's_cselect_b32 s{sG0}, s12, s13')
    def dmaW(g):
        p(f's_add_u32 m0, s{sT}, {(g % 4) * 16384}')
        p(f's_add_u32 s12, s{sWoff}, {g * 64 * 8192}')
        for tt in range(2): p(f'buffer_load_dwordx4 v{vWD+tt}, s[{SWQ}:{SWQ+3}], s12 offen offset:{tt*1024} lds', tokdef=f'W{g}')
    def dmaG(c):
        p(f's_add_u32 m0, s{sGl}, {c * 24576}')
        p(f's_add_u32 s12, s{sGoff}, {c * 24576}')
        for j in range(3): p(f'buffer_load_dwordx4 v2, s[{SGU}:{SGU+3}], s12 offen offset:{j*1024} lds', tokdef=f'G{c}')
    def xload(c):
        p(f's_lshl_b32 s12, s{sR32}, 15'); p(f's_add_u32 s12, s12, {c*4096}')
        for s in range(4): p(f'buffer_load_dwordx4 {ar(4*(4*c+s),4)}, v2, s[{SXN}:{SXN+3}], s12 offen offset:{s*1024}')
    for c in range(3): dmaW(c); xload(c)
    for c in range(3, 8): xload(c)
    for c in range(4): dmaG(c)
    p(f's_mul_i32 s12, s{sR32}, {NKS}'); p(f's_lshl_b32 s13, s{sH}, 3'); p('s_add_u32 s13, s12, s13'); p(f's_lshl_b32 s{sCtxOff}, s13, 10')
    p(f's_add_u32 s12, s12, s{sG0}'); p(f's_add_u32 s12, s12, 256'); p(f's_lshl_b32 s29, s12, 10')
    stamp(p, 0, sWave, t0)
    PDW = 4
    def wread(m):
        g, r = divmod(m, 16); s, n = divmod(r, 4)
        b = WF + 4 * (m % 8); off = (g % 4) * 16384 + s * 4096
        p(f'ds_read_b64_tr_b16 {vr(b,2)}, v{vW+n} offset:{off}')
        p(f'ds_read_b64_tr_b16 {vr(b+2,2)}, v{vW+n} offset:{off+1024}')
    def kv_dma(which, t, tok):
        if which == 'K':
            p(f's_add_u32 m0, s{sKdl}, {t*KSLOT}'); p(f's_add_u32 s12, s{sKbase}, {t*16384}')
            for j in range(4): p(f'buffer_load_dwordx4 v2, s[{sSRDK}:{sSRDK+3}], s12 offen offset:{j*1024} lds', tokdef=tok)
        else:
            p(f's_add_u32 m0, s{sVdl}, {t*VSLOT}'); p(f's_add_u32 s12, s{sVbase}, {t*16384}')
            for j in range(4): p(f'buffer_load_dwordx4 v2, s[{sSRDV}:{sSRDV+3}], s12 offen offset:{j*1024} lds', tokdef=tok)
    lab = [0]
    def a_only(fn):
        lab[0] += 1; L = f'K2_ao{lab[0]}'
        p(f's_cmp_ge_u32 s{sWave}, 4'); p(f's_cbranch_scc1 {L}'); fn(); p.label(L)
    p.waittok('W0'); p('s_barrier')
    for m in range(PDW): wread(m)
    def gread(m, nt):
        per = 8 * nt; c, r = divmod(m, per); s, t = divmod(r, nt)
        b = WF + 4 * (m % 8); off = (c % 2) * 24576 + s * 3072 + t * 64; a = vG + c // 2
        p(f'ds_read_b64_tr_b16 {vr(b,2)}, v{a} offset:{off}')
        p(f'ds_read_b64_tr_b16 {vr(b+2,2)}, v{a} offset:{off+768}')
    for g in range(8):
        for r in range(16):
            m = g * 16 + r; s, n = divmod(r, 4)
            a = vr(ACC + 16 * n, 16); wf = vr(WF + 4 * (m % 8), 4); xf = ar(4 * (4 * g + s), 4)
            cin = a if not (g == 0 and s == 0) else '0'
            p(f'v_mfma_f32_32x32x16_bf16 {a}, {wf}, {xf}, {cin}')
            if r == 16 - PDW - 1:
                p.waittok(*([f'W{g+1}'] if g < 7 else ['G0', 'G1', 'G2', 'G3'])); p('s_barrier')
            if m + PDW < 128: wread(m + PDW)
            if r == 16 - PDW and g + 3 < 8: dmaW(g + 3)
            if r == 16 - PDW and g == 7:
                a_only(lambda: (kv_dma('K', 0, 'K0'), kv_dma('K', 1, 'K1'), kv_dma('K', 2, 'K2')))
    QP = [104, 108, 120, 124, 96, 100, 112, 116]
    for n in (2, 3, 0, 1):
        a = ACC + 16 * n
        for j in range(16): p(f'v_mul_f32 v{a+j}, 0x{f2u(QSCALE):08x}, v{a+j}')
        for j in range(8): p(f'v_cvt_pk_bf16_f32 v{QP[2*n] + j}, v{a+2*j}, v{a+2*j+1}')
    GA = [64, 80, 16]
    def gu(nt, L):
        per = 8 * nt; tot = 4 * per
        for m in range(PDW): gread(m, nt)
        for m in range(tot):
            c, r = divmod(m, per); s, t = divmod(r, nt)
            a = vr(GA[t], 16); wf = vr(WF + 4 * (m % 8), 4); xf = ar(4 * (8 * c + s), 4)
            cin = a if not (c == 0 and s == 0) else '0'
            p(f'v_mfma_f32_32x32x16_bf16 {a}, {wf}, {xf}, {cin}')
            if r == per - PDW - 1 and c < 2:
                p('s_barrier')
            if m + PDW < tot: gread(m + PDW, nt)
            if r == per - PDW and c == 0: a_only(lambda: kv_dma('V', 0, 'V0'))
            if r == per - PDW and c == 1: a_only(lambda: kv_dma('V', 1, 'V1'))
        for t in range(nt):
            a = GA[t]
            for j in range(8):
                T = WF + 4 * (j % 4)
                p(f'v_mul_f32 v{T}, 0x{f2u(-1.4426950408889634):08x}, v{a+j}')
                p(f'v_exp_f32 v{T}, v{T}')
                p(f'v_mul_f32 v{T+1}, v{a+j}, v{a+8+j}')
                p(f'v_add_f32 v{T}, 1.0, v{T}')
                p(f'v_rcp_f32 v{T}, v{T}')
                p(f'v_mul_f32 v{a+j}, v{T+1}, v{T}')
            for j in range(4): p(f'v_cvt_pk_bf16_f32 v{a+j}, v{a+2*j}, v{a+2*j+1}')
            p(f'buffer_store_dwordx4 {vr(a,4)}, v2, s[{sSRDC}:{sSRDC+3}], s29 offen offset:{t*1024}')
    p(f's_cmp_ge_u32 s{sH}, 22'); p('s_cbranch_scc1 K2_gu2')
    gu(3, 'a'); p('s_branch K2_gud')
    p.label('K2_gu2'); gu(2, 'b')
    p.label('K2_gud')
    stamp(p, 1, sWave, t0)
    for s in range(8):
        for j in range(4): p(f'v_accvgpr_write_b32 a{AQ+4*s+j}, v{QP[s]+j}')
    p(f'v_mov_b32 v{VL16}, v2'); p(f'v_mov_b32 v{VDMA}, v2')
    p(f'v_and_b32 v3, 31, v{vL}'); p(f'v_lshrrev_b32 v4, 5, v{vL}'); p('v_lshlrev_b32 v4, 2, v4'); p('v_sub_u32 v3, v3, v4')
    p(f's_lshl_b32 s12, s{sR32}, 5'); p('v_add_u32 v3, s12, v3'); p('v_cvt_f32_i32 v3, v3'); p('v_add_f32 v3, 0.5, v3')
    p(f'v_mul_f32 v{VT}, 0x{f2u(BIG):08x}, v3')
    p(f'v_mov_b32 v{VK}, v{VL16}'); p(f'v_add_u32 v{VV}, {LDS_V}, v{VL16}')
    p(f's_mov_b32 s{sKsl}, 0'); p(f's_mov_b32 s{sVsl}, {LDS_V}')
    p(f's_cmp_ge_u32 s{sWave}, 4'); p('s_cbranch_scc1 K2_B')
    p(f's_add_u32 s{sKbase}, s{sKbase}, {3*16384}'); p(f's_add_u32 s{sVbase}, s{sVbase}, {2*16384}')
    p(f's_add_u32 s{sVdl}, s{sVdl}, {2*VSLOT}')
    p(f's_mov_b32 s{sKt}, 3'); p(f's_mov_b32 s{sKdma}, s{sKbase}'); p(f's_mov_b32 s{sVdma}, s{sVbase}')
    attention(p, True, 'A', tokwait=True)
    p(f's_sub_u32 s{sIt}, s{sNT}, s{sNTw}')
    dma_group(p); dma_advance(p)
    epilogue(p)
    p('s_waitcnt vmcnt(16)'); p('s_barrier')
    p(f's_sub_u32 s{sIt}, s{sIt}, 1')
    p.label('A_ld')
    dma_group(p); dma_advance(p)
    p('s_waitcnt vmcnt(8)'); p('s_barrier')
    p(f's_sub_u32 s{sIt}, s{sIt}, 1'); p(f's_cmp_lg_u32 s{sIt}, 0'); p('s_cbranch_scc1 A_ld')
    stamp(p, 2, sWave, 100)
    p('s_endpgm')
    rare_paths(p, 'A')
    p.label('K2_B')
    attention(p, False, 'B')
    stamp(p, 2, sWave, 100)
    epilogue(p)
    stamp(p, 3, sWave, 100); stamp_real(p, 4, sWave, 100)
    p('s_endpgm')
    rare_paths(p, 'B')
    p.label('K2_end'); p('s_endpgm')
    p.finalize()
    return NAME, p, (128, 128), 512, 163840, 256
if __name__ == '__main__':
    name, p, regs, blk, lds, grid = build()
    print(len(p.ins))
```

```python
from common import *
import common
NAME = 'oproj_kernel'
def build():
    p = Prog()
    sW, sS, sRB, sCT = 20, 21, 22, 23
    sT, sQ0, sAoff, sWo, sNch, sOOB = 24, 25, 26, 27, 28, 29
    SO, SD, SA, SP = 32, 36, 40, 44
    vL, vL16, vW, vWD = 1, 2, 4, 8
    t0, t1 = 12, 13
    WF, ACC = 32, 64
    p('s_cmp_ge_u32 s2, 256'); p('s_cbranch_scc1 K3_end')
    p('s_load_dwordx2 s[4:5], s[0:1], 40'); p('s_load_dwordx2 s[6:7], s[0:1], 72'); p('s_load_dwordx2 s[8:9], s[0:1], 96')
    stamp_init(p)
    p(f'v_lshrrev_b32 v{t0}, 6, v0'); p(f'v_readfirstlane_b32 s{sW}, v{t0}')
    p(f'v_and_b32 v{vL}, 63, v0'); p(f'v_lshlrev_b32 v{vL16}, 4, v{vL}')
    p(f's_and_b32 s{sS}, s2, 7'); p(f's_lshr_b32 s{sRB}, s2, 5'); p(f's_lshr_b32 s{sCT}, s2, 3'); p(f's_and_b32 s{sCT}, s{sCT}, 3')
    wtr_addr_setup(p, vW, vL, t0, t1, True)
    wdma_addr_setup(p, vWD, vL, t0, t1, 1024)
    p('s_waitcnt lgkmcnt(0)')
    srd(p, SO, 4, 0, 4096*512*2); srd(p, SD, 6, 0, 1376*512*2); srd(p, SA, 8, WS_AF, 64*NKS*1024); srd(p, SP, 8, WS_PT, 16 << 20)
    if common.STAMPS: srd(p, 84, 8, WS_TS, 1 << 20)
    p(f's_mul_i32 s{sQ0}, s{sS}, 11')
    p(f's_mov_b32 s{sOOB}, 0x80000000')
    p(f's_lshl_b32 s{sT}, s{sW}, 11')
    p(f's_lshl_b32 s10, s{sRB}, 3'); p(f's_add_u32 s10, s10, s{sW}'); p(f's_mul_i32 s11, s10, {NKS}'); p(f's_lshl_b32 s12, s{sQ0}, 2')
    p(f's_add_u32 s11, s11, s12'); p(f's_lshl_b32 s{sAoff}, s11, 10')
    p(f's_mov_b32 s30, s10')
    p(f's_lshl_b32 s11, s{sCT}, 8'); p(f's_lshl_b32 s12, s{sW}, 13'); p(f's_add_u32 s{sWo}, s11, s12')
    lab = [0]
    def dmaW(g):
        lab[0] += 1; L = f'K3w{lab[0]}'
        p(f's_add_u32 m0, s{sT}, {(g % 4) * 16384}')
        p(f's_add_u32 s10, s{sQ0}, {g}')
        p(f's_cmp_lt_u32 s10, 64'); p(f's_cbranch_scc1 {L}o')
        p(f's_sub_u32 s10, s10, 64'); p('s_lshl_b32 s10, s10, 16'); p(f's_add_u32 s10, s10, s{sWo}')
        for tt in range(2): p(f'buffer_load_dwordx4 v{vWD+tt}, s[{SD}:{SD+3}], s10 offen offset:{tt*1024} lds', tokdef=f'W{g}')
        p(f's_branch {L}j'); p.label(f'{L}o')
        p('s_lshl_b32 s10, s10, 16'); p(f's_add_u32 s10, s10, s{sWo}')
        for tt in range(2): p(f'buffer_load_dwordx4 v{vWD+tt}, s[{SO}:{SO+3}], s10 offen offset:{tt*1024} lds', tokdef=f'W{g}')
        p.label(f'{L}j')
    def aload(g):
        p(f's_add_u32 s10, s{sAoff}, {g*4096}')
        if g >= 8:
            p(f's_cmp_eq_u32 s{sS}, 7'); p(f's_cselect_b32 s11, s{sOOB}, s10')
            for s in range(4):
                so = 's11' if (g > 8 or s >= 2) else 's10'
                p(f'buffer_load_dwordx4 {ar(16*(g%4)+4*s,4)}, v{vL16}, s[{SA}:{SA+3}], {so} offen offset:{s*1024}')
        else:
            for s in range(4): p(f'buffer_load_dwordx4 {ar(16*(g%4)+4*s,4)}, v{vL16}, s[{SA}:{SA+3}], s10 offen offset:{s*1024}')
    for c in range(3): dmaW(c); aload(c)
    PDW = 4
    NCH = 11
    def wread(m):
        g, r = divmod(m, 16); s, n = divmod(r, 4)
        b = WF + 4 * (m % 8); off = (g % 4) * 16384 + s * 4096
        p(f'ds_read_b64_tr_b16 {vr(b,2)}, v{vW+n} offset:{off}')
        p(f'ds_read_b64_tr_b16 {vr(b+2,2)}, v{vW+n} offset:{off+2048}')
    stamp(p, 0, sW, t0, kern=2)
    p.waittok('W0'); p('s_barrier')
    for m in range(PDW): wread(m)
    for g in range(NCH):
        for r in range(16):
            m = g * 16 + r; s, n = divmod(r, 4)
            a = vr(ACC + 16 * n, 16); wf = vr(WF + 4 * (m % 8), 4); xf = ar(16 * (g % 4) + 4 * s, 4)
            cin = a if not (g == 0 and s == 0) else '0'
            p(f'v_mfma_f32_32x32x16_bf16 {a}, {wf}, {xf}, {cin}')
            if r == 16 - PDW - 1 and g < NCH - 1:
                p.waittok(f'W{g+1}'); p('s_barrier')
            if m + PDW < NCH * 16: wread(m + PDW)
            if r == 16 - PDW and g + 3 < NCH: dmaW(g + 3)
            if r == 15 and g + 3 < NCH: aload(g + 3)
        if g == 8:
            p(f's_cmp_eq_u32 s{sS}, 7'); p('s_cbranch_scc1 K3_epi')
    p.label('K3_epi')
    p(f's_lshl_b32 s10, s{sS}, 6'); p('s_add_u32 s10, s10, s30'); p('s_lshl_b32 s10, s10, 4'); p(f's_lshl_b32 s11, s{sCT}, 2'); p('s_add_u32 s10, s10, s11'); p('s_lshl_b32 s10, s10, 11')
    for n in range(4):
        a = ACC + 16 * n
        for j in range(8): p(f'v_cvt_pk_bf16_f32 v{a+j}, v{a+2*j}, v{a+2*j+1}')
        if n == 2: p('s_add_u32 s10, s10, 4096')
        for half in range(2): p(f'buffer_store_dwordx4 {vr(a+4*half,4)}, v{vL16}, s[{SP}:{SP+3}], s10 offen offset:{(n%2)*2048+half*1024}')
    stamp(p, 1, sW, t0, kern=2); stamp_real(p, 2, sW, t0, kern=2)
    p.label('K3_end'); p('s_endpgm')
    p.finalize()
    return NAME, p, (128, 64), 512, 65536, 256

NAME4 = 'reduce_kernel'
def build4():
    p = Prog()
    SP, SX, SO = 8, 12, 16
    p('s_cmp_ge_u32 s2, 256'); p('s_cbranch_scc1 K4_end')
    p('s_load_dwordx2 s[4:5], s[0:1], 96'); p('s_load_dwordx2 s[6:7], s[0:1], 0'); p('s_load_dwordx2 s[20:21], s[0:1], 80')
    p('v_lshrrev_b32 v1, 6, v0'); p('v_readfirstlane_b32 s22, v1'); p('v_and_b32 v1, 63, v0'); p('v_lshlrev_b32 v2, 4, v1')
    p('s_lshl_b32 s23, s2, 2'); p('s_add_u32 s23, s23, s22')
    p('s_waitcnt lgkmcnt(0)')
    srd(p, SP, 4, WS_PT, 16 << 20); srd(p, SX, 6, 0, 2048*512*2); srd(p, SO, 20, 0, 2048*512*2)
    p('s_lshl_b32 s24, s23, 11')
    for s in range(8):
        for half in range(2): p(f'buffer_load_dwordx4 {vr(16+8*s+4*half,4)}, v2, s[{SP}:{SP+3}], s24 offen offset:{half*1024}')
        if s < 7: p(f's_add_u32 s24, s24, {64*16*2048}')
    p('s_lshr_b32 s25, s23, 4'); p('s_and_b32 s26, s23, 15'); p('s_lshl_b32 s25, s25, 15'); p('s_lshl_b32 s26, s26, 6'); p('s_add_u32 s25, s25, s26')
    p('v_and_b32 v3, 31, v1'); p('v_lshlrev_b32 v3, 10, v3'); p('v_lshrrev_b32 v4, 5, v1'); p('v_lshlrev_b32 v4, 3, v4'); p('v_add_u32 v3, v3, v4')
    for g in range(4): p(f'buffer_load_dwordx2 {vr(8+2*g,2)}, v3, s[{SX}:{SX+3}], s25 offen offset:{g*16}')
    A = 80
    for j in range(8):
        p(f'v_lshlrev_b32 v{A+2*j}, 16, v{8+j}'); p(f'v_and_b32 v{A+2*j+1}, 0xffff0000, v{8+j}')
    for s in range(8):
        for j in range(8):
            src = 16 + 8 * s + j
            p(f'v_lshlrev_b32 v5, 16, v{src}'); p(f'v_and_b32 v6, 0xffff0000, v{src}')
            p(f'v_add_f32 v{A+2*j}, v{A+2*j}, v5'); p(f'v_add_f32 v{A+2*j+1}, v{A+2*j+1}, v6')
    for j in range(8): p(f'v_cvt_pk_bf16_f32 v{8+j}, v{A+2*j}, v{A+2*j+1}')
    for g in range(4): p(f'buffer_store_dwordx2 {vr(8+2*g,2)}, v3, s[{SO}:{SO+3}], s25 offen offset:{g*16}')
    p.label('K4_end'); p('s_endpgm')
    p.finalize()
    return NAME4, p, (96, 0), 256, 0, 256
if __name__ == '__main__':
    print(len(build()[1].ins), len(build4()[1].ins))
```

```python
import sys, os
sys.path.insert(0, 'gen')
import common
common.STAMPS = '-s' in sys.argv
STAMPS = common.STAMPS
import importlib
import k1, k2, k3
out = [a for a in sys.argv[1:] if not a.startswith('-')][0]
ks = [k1.build(), k2.build(), k3.build(), k3.build4()]
MAIN = 'parallel_sum__compressed_kv_cla__swiglu_ffn__prompt_kernel'
hdr = open('parallel_sum__compressed_kv_cla__swiglu_ffn__prompt.s.ref').read().split('; Override')[0]
s = hdr
for name, p, regs, blk, lds, grid in ks:
    s += f'; @launch kernel={name} grid=({grid},1,1) block=({blk},1,1) lds={lds}\n'
s += '.amdgcn_target "amdgcn-amd-amdhsa--gfx950"\n'
for name, p, regs, blk, lds, grid in ks:
    s += common.kernel_head(name) + p.text()
for name, p, regs, blk, lds, grid in ks:
    s += common.kernel_desc(name, regs[0], regs[1])
open(out, 'w').write(s)
print('written', out, len(s))
```

```python
import re, sys

REG_RE = re.compile(r'^(-|\|)?(abs\()?([vas])(\d+)\)?\|?$')
RNG_RE = re.compile(r'^(-)?([vas])\[(\d+):(\d+)\]$')

def regs_of(tok):
    tok = tok.strip()
    m = RNG_RE.match(tok)
    if m:
        return [f"{m.group(2)}{i}" for i in range(int(m.group(3)), int(m.group(4)) + 1)]
    m = REG_RE.match(tok)
    if m:
        return [f"{m.group(3)}{m.group(4)}"]
    if tok in ('vcc', 'exec', 'm0', 'scc'):
        return [tok]
    if tok in ('vcc_lo', 'vcc_hi'):
        return ['vcc']
    if tok in ('exec_lo', 'exec_hi'):
        return ['exec']
    return []

TRANS = ('v_exp_f32', 'v_log_f32', 'v_rcp_f32', 'v_rsq_f32', 'v_sqrt_f32', 'v_sin_f32', 'v_cos_f32')

class Ins:
    __slots__ = ('text', 'op', 'kind', 'defs', 'uses', 'tokdef', 'tokuse', 'target', 'passes', 'srcc', 'srcab',
                 'wide_store', 'comment', 'auto', 'nowait', 'opsel', 'xuse')
    def __init__(self, text, tokdef=None, tokuse=None, comment=None):
        self.text = text.strip(); self.comment = comment
        self.tokdef = tokdef; self.tokuse = tokuse or []
        self.target = None; self.passes = 0; self.srcc = []; self.srcab = []; self.wide_store = []
        self.auto = False; self.nowait = False; self.opsel = False; self.xuse = []
        self.parse()
    def parse(self):
        t = self.text
        if t.endswith(':'):
            self.op = 'label'; self.kind = 'label'; self.defs = []; self.uses = []; self.target = t[:-1]; return
        if t.startswith('.') or t.startswith(';') or t == '':
            self.op = 'dir'; self.kind = 'dir'; self.defs = []; self.uses = []; return
        parts = t.split(None, 1)
        op = parts[0]; self.op = op
        rest = parts[1] if len(parts) > 1 else ''
        ops = [o.strip() for o in rest.split(',')] if rest else []
        mods = ''
        if ops:
            last = ops[-1].split(None, 1)
            ops[-1] = last[0]
            mods = last[1] if len(last) > 1 else ''
        R = [regs_of(o) for o in ops]
        defs = []; uses = []
        base = re.sub(r'_e(32|64)$', '', op)
        if op.startswith('v_mfma'):
            self.kind = 'mfma'; defs = R[0]; self.srcab = R[1] + R[2]; self.srcc = R[3]; uses = R[1] + R[2] + R[3]
            if '32x32x16' in op: self.passes = 8
            elif '16x16x32' in op: self.passes = 4
            else: raise Exception('unknown mfma ' + op)
        elif op.startswith('ds_read') or op.startswith('ds_bpermute') or op.startswith('ds_swizzle'):
            self.kind = 'dsr'; defs = R[0]; uses = sum(R[1:], [])
        elif op.startswith('ds_write'):
            self.kind = 'dsw'; uses = sum(R, [])
        elif op.startswith('buffer_load') or op.startswith('global_load'):
            if ' lds' in (' ' + mods) or 'global_load_lds' in op:
                self.kind = 'dma'; uses = sum(R, []) + ['m0']
            else:
                self.kind = 'vml'; defs = R[0]; uses = sum(R[1:], [])
        elif op.startswith('buffer_store') or op.startswith('global_store'):
            self.kind = 'vms'; uses = sum(R, [])
            data = R[0] if op.startswith('buffer_store') else R[1]
            if 'x4' in op or 'x3' in op: self.wide_store = data
        elif op.startswith('buffer_atomic') or op.startswith('global_atomic'):
            self.kind = 'vms'; uses = sum(R, [])
            if 'sc0' in mods:
                self.kind = 'vml'
                defs = R[0]
                if op.startswith('global_atomic'): uses = sum(R[1:], [])
        elif op.startswith('buffer_inv') or op.startswith('buffer_wbl2'):
            self.kind = 'vms'
        elif op.startswith('s_load') or op.startswith('s_memtime') or op.startswith('s_memrealtime') or op.startswith('s_buffer_load'):
            self.kind = 'smem'; defs = R[0]; uses = sum(R[1:], [])
        elif op == 's_waitcnt':
            self.kind = 'wait'
        elif op == 's_barrier':
            self.kind = 'barrier'
        elif op == 's_nop':
            self.kind = 'nop'
        elif op in ('s_branch',):
            self.kind = 'branch'; self.target = ops[0]
        elif op.startswith('s_cbranch'):
            self.kind = 'cbranch'; self.target = ops[0]
            uses = ['scc'] if 'scc' in op else (['vcc'] if 'vcc' in op else ['exec'])
        elif op == 's_endpgm':
            self.kind = 'end'
        elif op in ('s_setprio', 's_sleep', 's_sethalt'):
            self.kind = 'salu'
        elif op.startswith('s_cmp') or op.startswith('s_bitcmp'):
            self.kind = 'salu'; defs = ['scc']; uses = sum(R, [])
        elif op.startswith('s_'):
            self.kind = 'salu'; defs = R[0] + ['scc']; uses = sum(R[1:], [])
            if op in ('s_mov_b32', 's_mov_b64', 's_movk_i32', 's_mul_i32', 's_mul_hi_u32', 's_cselect_b32', 's_cselect_b64', 's_getreg_b32'):
                defs = R[0]
            if op.startswith('s_cselect') or op in ('s_addc_u32', 's_subb_u32'): uses = uses + ['scc']
            if op in ('s_addk_i32', 's_mulk_i32'): uses = uses + R[0]
            if 'saveexec' in op: defs = defs + ['exec']; uses = uses + ['exec']
        elif op.startswith('v_'):
            self.kind = 'trans' if base in TRANS else 'valu'
            if op.startswith('v_cmp'):
                defs = R[0]; uses = sum(R[1:], [])
            elif op.startswith('v_readfirstlane') or op.startswith('v_readlane'):
                defs = R[0]; uses = sum(R[1:], [])
            elif 'permlane' in op and 'swap' in op:
                defs = R[0] + R[1]; uses = R[0] + R[1]
            elif base in ('v_add_co_u32', 'v_sub_co_u32', 'v_addc_co_u32', 'v_subb_co_u32', 'v_subrev_co_u32'):
                defs = R[0] + R[1]; uses = sum(R[2:], [])
            elif base in ('v_fmac_f32', 'v_dot2c_f32_bf16', 'v_pk_fmac_f16', 'v_writelane_b32'):
                defs = R[0]; uses = sum(R, [])
            else:
                defs = R[0]; uses = sum(R[1:], [])
                if base == 'v_cndmask_b32' and len(ops) == 3: uses = uses + ['vcc']
            if 'dpp' in op or 'row_' in mods or 'quad_perm' in mods: self.op = op + '|dpp';
            if 'op_sel' in mods or 'sdwa' in op or 'dst_sel' in mods: self.opsel = True
        else:
            raise Exception('cannot parse: ' + t)
        self.defs = defs; self.uses = uses

class Prog:
    def __init__(self):
        self.ins = []
    def __call__(self, text, xuse=None, **kw):
        for line in text.split('\n'):
            line = line.split(';;')[0].strip()
            if line:
                i = Ins(line, **kw)
                if xuse: i.xuse = sum([regs_of(x) for x in xuse], [])
                self.ins.append(i)
        return self.ins[-1]
    def add(self, i): self.ins.append(i)
    def label(self, name): self.ins.append(Ins(name + ':'))
    def waittok(self, *toks):
        i = Ins('; waittok ' + ','.join(toks)); i.kind = 'waittok'; i.tokuse = list(toks); self.ins.append(i)
    def comment(self, s): self.ins.append(Ins('; ' + s))

    def build_cfg(self, ins):
        labels = {}
        for k, i in enumerate(ins):
            if i.kind == 'label': labels[i.target] = k
        succ = [[] for _ in ins]
        for k, i in enumerate(ins):
            if i.kind == 'branch': succ[k] = [labels[i.target]]
            elif i.kind == 'cbranch': succ[k] = [labels[i.target]] + ([k + 1] if k + 1 < len(ins) else [])
            elif i.kind == 'end': succ[k] = []
            else: succ[k] = [k + 1] if k + 1 < len(ins) else []
        pred = [[] for _ in ins]
        for k, s in enumerate(succ):
            for t in s: pred[t].append(k)
        return succ, pred

    def insert_waits(self):
        ins = self.ins
        succ, pred = self.build_cfg(ins)
        n = len(ins)
        VMAX, LMAX = 63, 15
        instate = [None] * n
        need = [None] * n
        def merge(a, b):
            if a is None: return b, True
            va, la, sa = a; vb, lb, sb = b
            ch = False
            v = dict(va)
            for r, x in vb.items():
                if r not in v or x < v[r]: v[r] = x; ch = True
            l = dict(la)
            for r, x in lb.items():
                if r not in l or x < l[r]: l[r] = x; ch = True
            s = sa | sb
            if s != sa: ch = True
            return (v, l, s), ch
        def transfer(k, st):
            i = ins[k]; vm, lg, sm = dict(st[0]), dict(st[1]), set(st[2])
            vN = None; lN = None
            if i.kind == 'wait':
                m = re.search(r'vmcnt\((\d+)\)', i.text)
                if m:
                    x = int(m.group(1)); vm = {r: a for r, a in vm.items() if a < x}
                m = re.search(r'lgkmcnt\((\d+)\)', i.text)
                if m:
                    x = int(m.group(1)); lg = {r: a for r, a in lg.items() if a < x}
                    if x == 0: sm = set()
                return (vm, lg, frozenset(sm)), None
            touched = list(i.uses) + list(i.defs) + list(i.xuse) + ['tok:' + t for t in i.tokuse]
            if not i.nowait:
                for r in touched:
                    if r in vm:
                        if i.kind == 'vml' and r in i.defs and r not in i.uses: continue
                        vN = vm[r] if vN is None else min(vN, vm[r])
                    if r in lg:
                        if i.kind == 'dsr' and r in i.defs and r not in i.uses: continue
                        lN = lg[r] if lN is None else min(lN, lg[r])
                    if r in sm: lN = 0
            if lN is not None and sm: lN = 0
            if vN is not None:
                vN = min(vN, VMAX); vm = {r: a for r, a in vm.items() if a < vN}
            if lN is not None:
                lN = min(lN, LMAX); lg = {r: a for r, a in lg.items() if a < lN}
                if lN == 0: sm = set()
            if i.kind in ('vml', 'vms', 'dma'):
                vm = {r: a + 1 for r, a in vm.items()}
                for r in i.defs: vm[r] = 0
                if i.tokdef: vm['tok:' + i.tokdef] = 0
            elif i.kind in ('dsr', 'dsw'):
                lg = {r: a + 1 for r, a in lg.items()}
                for r in i.defs: lg[r] = 0
                if i.tokdef: lg['tok:' + i.tokdef] = 0
            elif i.kind == 'smem':
                for r in i.defs: sm.add(r)
                lg = {r: 0 for r in lg}
            return (vm, lg, frozenset(sm)), (vN, lN)
        def clamp(st):
            vm, lg, sm = st
            return ({r: min(a, VMAX) for r, a in vm.items()}, {r: min(a, LMAX) for r, a in lg.items()}, sm)
        instate[0] = ({}, {}, frozenset())
        work = [0]
        inwork = {0}
        while work:
            k = work.pop(); inwork.discard(k)
            out, w = transfer(k, instate[k])
            out = clamp(out)
            for s in succ[k]:
                m, ch = merge(instate[s], out)
                if ch or instate[s] is None:
                    instate[s] = m
                    if s not in inwork: work.append(s); inwork.add(s)
        new = []
        for k, i in enumerate(ins):
            if instate[k] is not None:
                _, w = transfer(k, instate[k])
                if w and (w[0] is not None or w[1] is not None):
                    p = []
                    if w[0] is not None: p.append(f'vmcnt({w[0]})')
                    if w[1] is not None: p.append(f'lgkmcnt({w[1]})')
                    wi = Ins('s_waitcnt ' + ' '.join(p)); wi.auto = True
                    new.append(wi)
            new.append(i)
        self.ins = new

    def insert_nops(self, verbose=False):
        ins = self.ins
        total = 0
        k = 0
        changed = True
        rounds = 0
        while changed:
            changed = False; rounds += 1
            succ, pred = self.build_cfg(ins)
            out = []
            last_ins = -100
            for k, i in enumerate(ins):
                if i.kind in ('label', 'dir', 'waittok', 'wait', 'nop', 'barrier', 'branch', 'end'):
                    out.append(i); continue
                need = self.hazard_need(ins, pred, k) if k - last_ins > 24 else 0
                if k - last_ins <= 24: changed = changed or (self.hazard_need(ins, pred, k) > 0)
                if need > 0:
                    changed = True; total += need; last_ins = k
                    if verbose: print(f'; nop {need} before: {i.text}', file=sys.stderr)
                    r = need
                    while r > 0:
                        c = min(r, 16); x = Ins(f's_nop {c-1}'); x.auto = True; out.append(x); r -= c
                out.append(i)
            ins = out
            if rounds > 200: raise Exception('nop insertion not converging')
        self.ins = ins
        return total

    def hazard_need(self, ins, pred, k):
        cur = ins[k]
        cu, cd = set(cur.uses), set(cur.defs)
        isvalu = cur.kind in ('valu', 'trans')
        need = 0
        MAXD = 20
        def req(p):
            r = 0
            pd = set(p.defs)
            if p.kind in ('valu', 'trans'):
                vg = {x for x in pd if x[0] in 'va' and x != 'vcc'}
                sg = {x for x in pd if x[0] == 's' or x == 'vcc'}
                if cur.kind == 'mfma' and vg & cu: r = max(r, 2)
                if p.kind == 'trans' and isvalu and vg & cu: r = max(r, 1)
                if p.opsel and isvalu and vg & (cu | cd): r = max(r, 1)
                if isvalu and (cur.op.startswith('v_readfirstlane') or cur.op.startswith('v_readlane')) and vg & cu: r = max(r, 1)
                if isvalu and ('permlane' in cur.op or '|dpp' in cur.op) and vg & cu: r = max(r, 2)
                if isvalu and sg & cu: r = max(r, 2)
                if isvalu and (cur.op.startswith('v_readlane') or cur.op.startswith('v_writelane')) and sg & cu: r = max(r, 4)
                if cur.kind in ('vml', 'vms', 'dma') and sg & cu: r = max(r, 5)
                if 'exec' in pd and (isvalu or cur.kind == 'mfma'): r = max(r, 5)
            if p.kind == 'mfma':
                P = p.passes
                full = {4: 8, 8: 12}[P]; part = {4: 6, 8: 10}[P]; war = {4: 3, 8: 7}[P]
                if cur.kind == 'mfma':
                    if pd & set(cur.srcab): r = max(r, full)
                    if pd & set(cur.srcc):
                        if not (p.defs == cur.srcc and p.passes == cur.passes): r = max(r, part)
                    if pd & cd and p.defs != cur.defs: r = max(r, part)
                else:
                    if isvalu or cur.kind in ('dsr', 'dsw', 'vml', 'vms', 'dma'):
                        if pd & (cu | cd): r = max(r, full)
                    if isvalu and set(p.srcc) & cd: r = max(r, war)
            if p.kind == 'salu' and 'm0' in pd and cur.kind == 'dma': r = max(r, 1)
            if p.kind == 'vms' and p.wide_store:
                if set(p.wide_store) & cd: r = max(r, 2 if isvalu else 1)
            return r
        best = 0
        stack = [(q, 0) for q in pred[k]]
        seen = {}
        while stack:
            q, d = stack.pop()
            if d >= MAXD: continue
            if q in seen and seen[q] <= d: continue
            seen[q] = d
            p = ins[q]
            if p.kind in ('label', 'dir', 'waittok'):
                w = 0
            else:
                r = req(p)
                if r - d > best: best = r - d
                w = 1
                if p.kind == 'nop': w = int(p.text.split()[1]) + 1
            for z in pred[q]: stack.append((z, d + w))
        return best

    def check_tokens(self):
        seen = set(); waited = {}
        for k, i in enumerate(self.ins):
            if i.tokdef: seen.add(i.tokdef)
            if i.kind == 'waittok':
                for t in i.tokuse:
                    if t not in seen: raise Exception('waittok on undefined token ' + t)
                    waited[t] = k
            if i.tokdef and i.tokdef in waited and k - waited[i.tokdef] < 400 and i.tokdef not in ('ATOM', 'K', 'V'):
                raise Exception('token defined after its wait: ' + i.tokdef)
    def finalize(self, verbose=False):
        self.check_tokens()
        self.insert_waits()
        n = self.insert_nops(verbose)
        return n
    def text(self):
        o = []
        for i in self.ins:
            if i.kind == 'label': o.append(i.text)
            else: o.append('    ' + i.text + (f'   ; {i.comment}' if i.comment else ''))
        return '\n'.join(o) + '\n'

def kernel_desc(name, vgprs, agprs=0, sgprs=102, arch=None):
    if agprs:
        acc = (vgprs + 3) // 4 * 4; nf = acc + agprs
    else:
        acc = (vgprs + 3) // 4 * 4; nf = vgprs
    return f'''.section .rodata,"a"
.p2align 6
.amdhsa_kernel {name}
  .amdhsa_next_free_vgpr {nf}
  .amdhsa_next_free_sgpr {sgprs}
  .amdhsa_accum_offset {acc}
  .amdhsa_group_segment_fixed_size 0
  .amdhsa_kernarg_size 104
  .amdhsa_user_sgpr_count 2
  .amdhsa_user_sgpr_kernarg_segment_ptr 1
  .amdhsa_system_sgpr_workgroup_id_x 1
  .amdhsa_float_denorm_mode_32 3
.end_amdhsa_kernel
.text
'''
def kernel_head(name):
    return f'''.text
.globl {name}
.p2align 8
.type {name},@function
{name}:
'''
```

```python
from asm import *
from common import *

S = [16, 32]
NEGM = 48
P = [64, 72]
E = 80
LS = 88
LRUN = 89
VK, VKN, VV = 90, 91, 92
VL16 = 93
VT = 94
T0, T1, T2, T3 = 95, 96, 97, 98
VDMA = 99
AO, AQ, AF = 0, 64, 96
import os
PD = int(os.environ.get('PD', 6))
GRP = int(os.environ.get('GRP', 1))
EXPT = os.environ.get('EXPT', '')
PD0 = 5

KSLOT, VSLOT = 16384, 16384
LDS_K, LDS_V = 0, 49152
NK, NV = 3, 4

sKsl, sVsl = 40, 41
sIt = 42
sKdma, sVdma = 43, 44
sKdl, sVdl = 45, 46
sThr = 47
sSRDK, sSRDV = 28, 28
sTmp = 56
sMaskU = 57

def frag(n): return ar(AF + 4 * (n % 8), 4)

def frag_read(p, gslot):
    n = gslot
    if n >= 32:
        s = n - 32
        assert s < 8
        p(f'ds_read_b128 {frag(n)}, v{VK} offset:{s*1024}')
        return
    per, s = n // 16, n % 16
    if s < 8:
        p(f'ds_read_b128 {frag(n)}, v{VK} offset:{(per*8+s)*1024}')
    else:
        p(f'ds_read_b128 {frag(n)}, v{VV} offset:{(per*8+s-8)*1024}')

def dma_ops(which):
    o = []
    if 'nodma' in EXPT: return [[], [], [], [], []]
    if which == 'K':
        o.append([f's_mov_b32 m0, s{sKdl}'])
        for j in range(4): o.append([(f'buffer_load_dwordx4 v{VDMA}, s[{sSRDK}:{sSRDK+3}], s{sKdma} offen offset:{j*1024} sc1 lds', 'K')])
    else:
        o.append([f's_mov_b32 m0, s{sVdl}'])
        for j in range(4): o.append([(f'buffer_load_dwordx4 v{VDMA}, s[{sSRDV}:{sSRDV+3}], s{sVdma} offen offset:{j*1024} sc1 lds', 'V')])
    return o

def period(p, par, qk=True, sm=True, pv=True, masked=False, gbase=0, reads=True, rare=None, next_reads=True, hooks=None, tail=None, early=True):
    sn, so = S[par], S[1 - par]
    pn, po = P[1 - par], P[par]
    fill = [[] for _ in range(16)]
    if sm:
        for r in range(2, 16): fill[r - 2].append(f'v_exp_f32 v{E + r % 8}, v{so + r}')
        for r in range(1, 16):
            if r == 1: fill[0].append(f'v_add_f32 v{LS}, v{E}, v{E+1}')
            else: fill[r - 1].append(f'v_add_f32 v{LS}, v{LS}, v{E + r % 8}')
        for k in range(8): fill[2 * k].append(f'v_cvt_pk_bf16_f32 v{pn + k}, v{E + (2*k) % 8}, v{E + (2*k+1) % 8}')
        fill[15].append(f'v_cmp_lt_f32 vcc, s{sThr}, v{LS}')
    if early:
        fill[14].append(f'v_exp_f32 v{E}, v{sn}')
        fill[15].insert(0, f'v_exp_f32 v{E+1}, v{sn+1}')
    hooks = hooks or {}
    def emit(lst):
        for x in lst:
            if isinstance(x, tuple): p(x[0], tokdef=x[1])
            else: p(x)
    for s in range(16):
        g = gbase + s
        if masked and qk and s == 0:
            mask_init(p, par, sMaskU)
        xu = [frag(g + j) for j in range(1, GRP)] if g % GRP == 0 else None
        if s < 8:
            if qk:
                c = vr(sn, 16) if (s > 0 or masked) else vr(NEGM, 16)
                p(f'v_mfma_f32_32x32x16_bf16 {vr(sn,16)}, {frag(g)}, {ar(AQ+4*s,4)}, {c}', xuse=xu)
        else:
            if pv:
                ks, dt = (s - 8) // 4, (s - 8) % 4
                p(f'v_mfma_f32_32x32x16_bf16 {ar(AO+16*dt,16)}, {frag(g)}, {vr(po+4*ks,4)}, {ar(AO+16*dt,16)}', xuse=xu)
        emit(hooks.get(g, {}).get('pre', []))
        if reads and g % GRP == 0 and 'noread' not in EXPT:
            for j in range(GRP):
                ng = g + PD + j
                if ng < 32:
                    ok = reads(ng // 16, ng % 16) if callable(reads) else True
                else:
                    ok = next_reads
                if ok: frag_read(p, ng)
        for f in fill[s]:
            if 'noadd' in EXPT and f.startswith('v_add'): continue
            if 'noexp' in EXPT and f.startswith('v_exp'): continue
            if 'nocvt' in EXPT and f.startswith('v_cvt'): continue
            p(f)
        emit(hooks.get(g, {}).get('post', []))
    if sm:
        if rare: p(f's_cbranch_vccnz {rare}')
        if rare: p.label(rare + '_ret')
        p(f'v_add_f32 v{LRUN}, v{LRUN}, v{LS}')

BIG = 2.0 ** 90

def mask_init2(p, sb):
    for r in range(16):
        c = (r >> 2) * 8 + (r & 3)
        if c == 0: p(f'v_min_f32 v{S[sb]+r}, v{VT}, v{NEGM+r}')
        else:
            p(f'v_add_f32 v{S[sb]+r}, 0x{f2u(-c*BIG):08x}, v{VT}')
            p(f'v_min_f32 v{S[sb]+r}, v{S[sb]+r}, v{NEGM+r}')
    p(f'v_add_f32 v{VT}, 0x{f2u(-32*BIG):08x}, v{VT}')
def mask_init(p, sb, _u): mask_init2(p, sb)

def rowmax(p, sb, dst):
    b = S[sb]
    p(f'v_max3_f32 v{dst}, v{b}, v{b+1}, v{b+2}')
    for r in range(3, 15, 2): p(f'v_max3_f32 v{dst}, v{dst}, v{b+r}, v{b+r+1}')
    p(f'v_max_f32 v{dst}, v{dst}, v{b+15}')
    p(f'v_mov_b32 v{T3}, v{dst}')
    p(f'v_permlane32_swap_b32 v{dst}, v{T3}')
    p(f'v_max_f32 v{dst}, v{dst}, v{T3}')

def sm_plain(p, sb, pb):
    so = S[sb]; pn = P[pb]
    for r in range(0, 16, 2):
        p(f'v_exp_f32 v{E}, v{so+r}')
        p(f'v_exp_f32 v{E+1}, v{so+r+1}')
        if r == 0: p(f'v_add_f32 v{LS}, v{E}, v{E+1}')
        else:
            p(f'v_add_f32 v{LS}, v{LS}, v{E}')
            p(f'v_add_f32 v{LS}, v{LS}, v{E+1}')
        p(f'v_cvt_pk_bf16_f32 v{pn + r//2}, v{E}, v{E+1}')

def rare_path(p, label, par):
    p.label(label)
    rowmax(p, 1 - par, T1)
    p(f'v_max_f32 v{T1}, 0, v{T1}')
    p(f'v_exp_f32 v{T2}, -v{T1}')
    for r in range(16):
        p(f'v_sub_f32 v{S[1-par]+r}, v{S[1-par]+r}, v{T1}')
        p(f'v_sub_f32 v{S[par]+r}, v{S[par]+r}, v{T1}')
        p(f'v_sub_f32 v{NEGM+r}, v{NEGM+r}, v{T1}')
    p(f'v_mul_f32 v{LRUN}, v{LRUN}, v{T2}')
    for r in range(64):
        p(f'v_accvgpr_read_b32 v{E + r % 4}, a{AO+r}')
        p(f'v_mul_f32 v{E + r % 4}, v{E + r % 4}, v{T2}')
        p(f'v_accvgpr_write_b32 a{AO+r}, v{E + r % 4}')
    sm_plain(p, 1 - par, 1 - par)
    p(f'v_exp_f32 v{E}, v{S[par]}')
    p(f'v_exp_f32 v{E+1}, v{S[par]+1}')
    p(f's_branch {label}_ret')

def _unused_iter_head(p, loader, wait):
    if loader: p(f's_waitcnt vmcnt({wait})')
    p('s_barrier')

def adv_k():
    return [f's_add_u32 s{sKsl}, s{sKsl}, {KSLOT}', f's_cmp_eq_u32 s{sKsl}, {NK*KSLOT}', f's_cselect_b32 s{sKsl}, 0, s{sKsl}',
            f'v_add_u32 v{VK}, s{sKsl}, v{VL16}']
def adv_v():
    return [f's_add_u32 s{sVsl}, s{sVsl}, {VSLOT}', f's_cmp_eq_u32 s{sVsl}, {LDS_V + NV*VSLOT}', f's_cselect_b32 s{sVsl}, {LDS_V}, s{sVsl}',
            f'v_add_u32 v{VV}, s{sVsl}, v{VL16}']
def dma_adv():
    return [f's_add_u32 s{sKt}, s{sKt}, 1',
    f's_add_u32 s{sKbase}, s{sKbase}, 16384',
    f's_cmp_lt_u32 s{sKt}, s{sNT}',
    f's_cselect_b32 s{sKdma}, s{sKbase}, s{sOOB}',
    f's_add_u32 s{sVbase}, s{sVbase}, 16384',
    f's_cmp_le_u32 s{sKt}, s{sNT}',
    f's_cselect_b32 s{sVdma}, s{sVbase}, s{sOOB}',
    f's_add_u32 s{sKdl}, s{sKdl}, {KSLOT}',
    f's_cmp_ge_u32 s{sKdl}, {NK*KSLOT}',
    f's_cselect_b32 s{sTmp}, {NK*KSLOT}, 0',
    f's_sub_u32 s{sKdl}, s{sKdl}, s{sTmp}',
    f's_add_u32 s{sVdl}, s{sVdl}, {VSLOT}',
    f's_cmp_ge_u32 s{sVdl}, {LDS_V + NV*VSLOT}',
    f's_cselect_b32 s{sTmp}, {NV*VSLOT}, 0',
    f's_sub_u32 s{sVdl}, s{sVdl}, s{sTmp}']
def dma_advance(p):
    for x in dma_adv(): p(x)
sKt, sNT, sKbase, sVbase, sOOB = 58, 59, 60, 61, 62
sNTw, sR32, sCtxOff = 63, 64, 66
sWave, sH, sI = 3, 33 + 3, 37
STSC = ' sc1'
def _stsc():
    import attn
    return attn.STSC
sSRDC = 28

def dma_group(p):
    for grp in dma_ops('K') + dma_ops('V'):
        for x in grp:
            if isinstance(x, tuple): p(x[0])
            else: p(x)

def iteration(p, loader, masked=False, final=False, rare=None, loop=None):
    BS = 32 - PD
    hooks = {g: {'pre': [], 'post': []} for g in range(32)}
    if loader:
        d = dma_ops('K') + dma_ops('V')
        sl = [1, 3, 5, 7, 9, 11, 13, 15, 17, 19]
        for g, grp in zip(sl, d): hooks[g]['post'] += grp
        adv = dma_adv()
        for n, x in enumerate(adv): hooks[20 + n // 3]['post'].append(x)
    kadv = adv_k(); vadv = adv_v()
    hooks[24 - PD + 1]['post'] += kadv[:3]; hooks[24 - PD + 2]['post'] += kadv[3:]
    hooks[BS]['pre'] += ([f's_waitcnt vmcnt(8)'] if loader else []) + ['s_barrier']
    hooks[BS + 1]['post'] += vadv[:3]; hooks[BS + 2]['post'] += vadv[3:]
    if loop:
        hooks[30]['post'] += [f's_sub_u32 s{sIt}, s{sIt}, 1']
        hooks[31]['post'] += [f's_cmp_lg_u32 s{sIt}, 0']
    if final:
        rd = lambda per, s: s >= 8
        period(p, 0, qk=False, sm=True, pv=True, gbase=0, reads=rd, rare=rare and rare + 'a', hooks=hooks, early=False)
        period(p, 1, qk=False, sm=False, pv=True, gbase=16, reads=rd, next_reads=False, hooks=hooks, early=False)
    else:
        period(p, 0, masked=masked, gbase=0, rare=rare and rare + 'a', hooks=hooks)
        period(p, 1, masked=masked, gbase=16, rare=rare and rare + 'b', hooks=hooks)
    if loop: p(f's_cbranch_scc1 {loop}')

def attention(p, loader, pre, tokwait=False):
    L = pre
    for r in range(64): p(f'v_accvgpr_write_b32 a{AO+r}, 0')
    for r in range(16): p(f'v_mov_b32 v{NEGM+r}, 0')
    if loader:
        if tokwait: p.waittok('K0')
        else: p('s_waitcnt vmcnt(16)')
    p('s_barrier')
    mask_init2(p, 0)
    for s in range(8): p(f'ds_read_b128 {frag(s)}, v{VK} offset:{s*1024}')
    for s in range(8): p(f'v_mfma_f32_32x32x16_bf16 {vr(S[0],16)}, {frag(s)}, {ar(AQ+4*s,4)}, {vr(S[0],16)}')
    for s in range(8): p(f'ds_read_b128 {frag(s)}, v{VK} offset:{(8+s)*1024}')
    rowmax(p, 0, T1)
    for r in range(16):
        p(f'v_sub_f32 v{S[0]+r}, v{S[0]+r}, v{T1}')
        p(f'v_sub_f32 v{NEGM+r}, 0, v{T1}')
    mask_init2(p, 1)
    for s in range(8): p(f'v_mfma_f32_32x32x16_bf16 {vr(S[1],16)}, {frag(s)}, {ar(AQ+4*s,4)}, {vr(S[1],16)}')
    for x in adv_k(): p(x)
    if loader:
        if tokwait: p.waittok('K1', 'V0')
        else: p('s_waitcnt vmcnt(8)')
    p('s_barrier')
    for s in range(PD): p(f'ds_read_b128 {frag(s)}, v{VK} offset:{s*1024}')
    sm_plain(p, 0, 0)
    p(f'v_mov_b32 v{LRUN}, v{LS}')
    p(f'v_exp_f32 v{E}, v{S[1]}')
    p(f'v_exp_f32 v{E+1}, v{S[1]+1}')
    p(f's_sub_i32 s{sIt}, s{sNTw}, 3')
    p(f's_cmp_le_i32 s{sIt}, 0')
    p(f's_cbranch_scc1 {L}_masked_setup')
    p.label(f'{L}_loop')
    iteration(p, loader, rare=f'{L}_r0', loop=f'{L}_loop')
    p.label(f'{L}_masked_setup')
    p(f's_sub_i32 s{sTmp}, s{sNTw}, 3')
    p(f's_max_i32 s{sTmp}, s{sTmp}, 0')
    p(f's_sub_i32 s{sIt}, s{sNTw}, s{sTmp}')
    p(f's_sub_i32 s{sIt}, s{sIt}, 1')
    p(f's_lshl_b32 s{sTmp}, s{sTmp}, 6')
    p(f'v_cvt_f32_u32 v{T0}, s{sTmp}')
    p(f'v_mul_f32 v{T0}, 0x{f2u(BIG):08x}, v{T0}')
    p(f'v_sub_f32 v{VT}, v{VT}, v{T0}')
    p.label(f'{L}_mloop')
    iteration(p, loader, masked=True, rare=f'{L}_r1', loop=f'{L}_mloop')
    iteration(p, loader, final=True, rare=f'{L}_r2')

def epilogue(p, dual):
    p(f'v_mov_b32 v{T1}, v{LRUN}')
    p(f'v_mov_b32 v{T2}, v{LRUN}')
    p(f'v_permlane32_swap_b32 v{T1}, v{T2}')
    p(f'v_add_f32 v{T1}, v{T1}, v{T2}')
    p(f'v_rcp_f32 v{T1}, v{T1}')
    for dt in range(4):
        for ks in range(2):
            b = 48; o = 16 + 4 * (dt * 2 + ks)
            for j in range(8): p(f'v_accvgpr_read_b32 v{b+j}, a{AO+16*dt+8*ks+j}')
            for j in range(8): p(f'v_mul_f32 v{b+j}, v{b+j}, v{T1}')
            for j in range(4): p(f'v_cvt_pk_bf16_f32 v{o+j}, v{b+2*j}, v{b+2*j+1}')
    def st(fl):
        p(f's_add_u32 s{sTmp}, s{sCtxOff}, 4096')
        for f in range(8):
            so = sCtxOff if f < 4 else sTmp
            p(f'buffer_store_dwordx4 {vr(16+4*f,4)}, v{VL16}, s[{sSRDC}:{sSRDC+3}], s{so} offen offset:{(f%4)*1024}{fl}')
    dual(st)

def rare_paths(p, L):
    for nm in ('r0', 'r1'):
        rare_path(p, f'{L}_{nm}a', 0)
        rare_path(p, f'{L}_{nm}b', 1)
    rare_path(p, f'{L}_r2a', 0)
```

```python
from asm import *
import struct
def f2u(x): return struct.unpack('<I', struct.pack('<f', x))[0]
def vr(b, n): return f'v[{b}:{b+n-1}]'
def ar(b, n): return f'a[{b}:{b+n-1}]'
WS_KF  = 0
WS_VF  = 16 << 20
WS_XN  = 32 << 20
WS_GU  = 36 << 20
WS_AF  = 40 << 20
WS_PT  = 64 << 20
WS_CNT = 80 << 20
WS_SIZE = 100 << 20
WS_TS  = 96 << 20
NKS = 342
KA = dict(x=0, ckv=8, wq=16, wuk=24, wuv=32, wo=40, bx=48, wg=56, wu=64, wd=72, out=80, dbg=88, ws=96)
def srd(p, s, base_pair, off, nbytes):
    if off:
        p(f's_add_u32 s{s}, s{base_pair}, {off}')
        p(f's_addc_u32 s{s+1}, s{base_pair+1}, 0')
        p(f's_and_b32 s{s+1}, s{s+1}, 0xffff')
    else:
        if s != base_pair: p(f's_mov_b32 s{s}, s{base_pair}')
        p(f's_and_b32 s{s+1}, s{base_pair+1}, 0xffff')
    p(f's_mov_b32 s{s+2}, {nbytes}')
    p(f's_mov_b32 s{s+3}, 0x20000')
STAMPS = False
def stamp_init(p):
    if not STAMPS: return
    p('s_memtime s[90:91]'); p('s_memrealtime s[88:89]')
def stamp(p, idx, sw, vt=None, kern=0):
    if not STAMPS: return
    p('s_memtime s[92:93]'); p('s_waitcnt lgkmcnt(0)')
    p('s_sub_u32 s92, s92, s90'); p(f'v_mov_b32 v{vt}, s92')
    p(f's_lshl_b32 s94, s2, 3'); p(f's_add_u32 s94, s94, s{sw}'); p('s_lshl_b32 s94, s94, 8'); p(f's_add_u32 s94, s94, {idx*4}')
    p(f'v_mov_b32 v{vt+1}, 0'); p(f'buffer_store_dword v{vt}, v{vt+1}, s[84:87], s94 offen')
def stamp_real(p, idx, sw, vt, kern=0):
    if not STAMPS: return
    p('s_memrealtime s[92:93]'); p('s_waitcnt lgkmcnt(0)')
    p('s_sub_u32 s92, s92, s88'); p(f'v_mov_b32 v{vt}, s92')
    p(f's_lshl_b32 s94, s2, 3'); p(f's_add_u32 s94, s94, s{sw}'); p('s_lshl_b32 s94, s94, 8'); p(f's_add_u32 s94, s94, {idx*4}')
    p(f'v_mov_b32 v{vt+1}, 0'); p(f'buffer_store_dword v{vt}, v{vt+1}, s[84:87], s94 offen')

def wave_sum(p, v, t):
    for m in (0x041F, 0x081F, 0x101F, 0x201F, 0x401F):
        p(f'ds_swizzle_b32 v{t}, v{v} offset:0x{m:04X}')
        p(f'v_add_f32 v{v}, v{v}, v{t}')
    p(f'v_mov_b32 v{t}, v{v}')
    p(f'v_permlane32_swap_b32 v{v}, v{t}')
    p(f'v_add_f32 v{v}, v{v}, v{t}')

def wtr_addr_setup(p, vW, vl, t0, t1, permk):
    p(f'v_lshrrev_b32 v{t0}, 5, v{vl}')
    p(f'v_lshlrev_b32 v{t0}, {2 if permk else 3}, v{t0}')
    p(f'v_bfe_u32 v{t1}, v{vl}, 2, 2')
    p(f'v_add_u32 v{t0}, v{t0}, v{t1}')
    p(f'v_lshlrev_b32 v{t0}, 8, v{t0}')
    p(f'v_bfe_u32 v{vW}, v{vl}, 4, 1'); p(f'v_lshlrev_b32 v{vW}, 5, v{vW}')
    p(f'v_add_u32 v{t0}, v{t0}, v{vW}')
    p(f'v_and_b32 v{vW}, 3, v{vl}'); p(f'v_lshlrev_b32 v{vW}, 3, v{vW}')
    p(f'v_add_u32 v{t0}, v{t0}, v{vW}')
    for n in range(4):
        p(f'v_xor_b32 v{vW+n}, {n}, v{t1}')
        p(f'v_lshlrev_b32 v{vW+n}, 6, v{vW+n}')
        p(f'v_add_u32 v{vW+n}, v{vW+n}, v{t0}')
def wdma_addr_setup(p, vD, vl, t0, t1, rowstride):
    p(f'v_lshrrev_b32 v{t0}, 4, v{vl}')
    p(f'v_bfe_u32 v{t1}, v{vl}, 2, 2')
    p(f'v_xor_b32 v{t1}, v{t1}, v{t0}')
    p(f'v_lshlrev_b32 v{t1}, 6, v{t1}')
    p(f'v_and_b32 v{vD}, 3, v{vl}'); p(f'v_lshlrev_b32 v{vD}, 4, v{vD}')
    p(f'v_add_u32 v{t1}, v{t1}, v{vD}')
    p(f'v_mul_u32_u24 v{t0}, {rowstride}, v{t0}')
    p(f'v_add_u32 v{vD}, v{t0}, v{t1}')
    p(f'v_add_u32 v{vD+1}, {4*rowstride-1024}, v{vD}')
```

```python
import sys, os
sys.path.insert(0, 'gen')
import common
common.STAMPS = '-s' in sys.argv
from common import *
from attn import *
import attn
NAME = 'parallel_sum__compressed_kv_cla__swiglu_ffn__prompt_kernel'
QSCALE = 128 ** -0.5 * 1.4426950408889634
WS = 28; DBG = 32
SA, SB, SC, SD, SE, SF = 48, 52, 68, 72, 76, 80
SC1 = '' if 'nosc1' in os.environ.get('FX', '') else ' sc1'
NOINV = 'noinv' in os.environ.get('FX', '')
attn.STSC = SC1
SPIN_LIMIT = 1 << 18
CNT_S2, CNT_S3, CNT_S4 = WS_CNT, WS_CNT + 32 * 128, WS_CNT + 96 * 128
sFast = 96
LD1 = ' sc1'
PF = 'nopf' not in os.environ.get('FX', '')
FORCE = os.environ.get('FORCE', '')
vAT, vONE, vPOLL, vZ = 124, 125, 126, 127

def st(p, idx, vt):
    stamp(p, idx, sWave, vt)

class Sync:
    def __init__(self, p): self.p = p; self.n = 0; self.tail = []
    def arrive(self, srdn, soff, t0, t1, val='1'):
        p = self.p
        p(f'v_mbcnt_lo_u32_b32 v{t0}, -1, 0'); p(f'v_mbcnt_hi_u32_b32 v{t0}, -1, v{t0}')
        p(f'v_cmp_eq_u32 vcc, 0, v{t0}'); p(f'v_mov_b32 v{t1}, 0x7fffff00')
        p(f'v_cndmask_b32 v{t0}, v{t1}, v{t0}, vcc')
        p(f'v_mov_b32 v{t1}, {val}')
        p(f'buffer_atomic_add v{t1}, v{t0}, s[{srdn}:{srdn+3}], {soff} offen sc1_ATOM', tokdef='ATOM')
    def poll_issue(self, srdn, soff, vp, vz):
        p = self.p
        p(f'v_mov_b32 v{vz}, 0')
        p(f'buffer_load_dword v{vp}, v{vz}, s[{srdn}:{srdn+3}], {soff} offen sc1')
    def poll_check(self, srdn, soff, vp, vz, target, mask=None):
        p = self.p; self.n += 1; L = f'SY{self.n}'
        p(f'v_readfirstlane_b32 s38, v{vp}')
        if mask: p(f's_and_b32 s39, s38, {mask}'); p(f's_cmp_ge_u32 s39, {target}')
        else: p(f's_cmp_ge_u32 s38, {target}')
        p(f's_cbranch_scc1 {L}_ok')
        self.spin(srdn, soff, vp, vz, target, mask)
        p.label(f'{L}_ok')
    def spin(self, srdn, soff, vp, vz, target, mask=None):
        p = self.p; self.n += 1; L = f'SP{self.n}'
        p('s_mov_b32 s95, 0'); p(f'v_mov_b32 v{vz}, 0')
        p.label(L)
        p(f'buffer_load_dword v{vp}, v{vz}, s[{srdn}:{srdn+3}], {soff} offen sc1')
        p(f'v_readfirstlane_b32 s38, v{vp}')
        if mask: p(f's_and_b32 s39, s38, {mask}'); p(f's_cmp_ge_u32 s39, {target}')
        else: p(f's_cmp_ge_u32 s38, {target}')
        p(f's_cbranch_scc1 {L}_d')
        p('s_add_u32 s95, s95, 1'); p(f's_cmp_lt_u32 s95, {SPIN_LIMIT}'); p(f's_cbranch_scc1 {L}')
        p.label(f'{L}_d')

def build():
    p = Prog(); sy = Sync(p)
    lab = [0]
    def only(cond, fn):
        lab[0] += 1; L = f'ON{lab[0]}'
        if cond == 'w0': p(f's_cmp_lg_u32 s{sWave}, 0')
        else: p(f's_cmp_ge_u32 s{sWave}, 4')
        p(f's_cbranch_scc1 {L}'); fn(); p.label(L)
    vL, vL16 = 1, 2
    vW, vWD = 4, 8
    t0, t1, t2, t3 = 18, 19, 20, 21
    WF, ACC = 32, 64
    sWoff, sCoff, sCl, sOut, sT = 65, 67, 57, 56, 39
    sT = 47
    p('s_cmp_ge_u32 s2, 256'); p('s_cbranch_scc1 K_end')
    p('s_load_dwordx16 s[4:19], s[0:1], 0'); p('s_load_dwordx8 s[20:27], s[0:1], 64'); p('s_load_dwordx2 s[92:93], s[0:1], 96')
    stamp_init(p)
    p(f'v_lshrrev_b32 v{t0}, 6, v0'); p(f'v_readfirstlane_b32 s{sWave}, v{t0}')
    p(f'v_and_b32 v{vL}, 63, v0'); p(f'v_lshlrev_b32 v{vL16}, 4, v{vL}')
    p('s_and_b32 s38, s2, 7'); p('s_lshl_b32 s38, s38, 2'); p('s_lshr_b32 s39, s2, 3'); p('s_and_b32 s39, s39, 3')
    p(f's_add_u32 s{sH}, s38, s39'); p(f's_lshr_b32 s{sI}, s2, 5')
    wtr_addr_setup(p, vW, vL, t0, t1, False)
    wdma_addr_setup(p, vWD, vL, t0, t1, 8192)
    vCD, vCR, vW1 = 10, 12, 14
    p(f'v_bfe_u32 v{t0}, v{vL}, 4, 2'); p(f'v_and_b32 v{t1}, 3, v{vL}'); p(f'v_xor_b32 v{t0}, v{t0}, v{t1}'); p(f'v_lshlrev_b32 v{t0}, 4, v{t0}')
    p(f'v_lshrrev_b32 v{t1}, 2, v{vL}'); p(f'v_lshl_add_u32 v{vCD}, v{t1}, 10, v{t0}'); p(f'v_add_u32 v{vCD+1}, {16*1024-1024}, v{vCD}')
    SLOT1 = lambda g: ((g + 4) % 5) * 32768
    p(f's_lshl_b32 s{sCl}, s{sWave}, 11')
    p(f'v_and_b32 v{t0}, 31, v{vL}'); p(f'v_bfe_u32 v{t1}, v{vL}, 2, 2'); p(f'v_lshrrev_b32 v{t2}, 5, v{vL}')
    p(f's_add_u32 s38, s{sCl}, {SLOT1(0)}')
    for q in range(2):
        p(f'v_add_u32 v{t3}, {2*q}, v{t2}'); p(f'v_xor_b32 v{t3}, v{t3}, v{t1}'); p(f'v_lshlrev_b32 v{t3}, 4, v{t3}')
        p(f'v_lshl_add_u32 v{t3}, v{t0}, 6, v{t3}'); p(f'v_add_u32 v{vCR+q}, s38, v{t3}')
    for n in range(4): p(f'v_add_u32 v{vW1+n}, {SLOT1(0) + 16384}, v{vW+n}')
    p('s_waitcnt lgkmcnt(0)')
    srd(p, WS, 92, 0, WS_SIZE); srd(p, DBG, 26, 0, 256)
    if common.STAMPS: srd(p, 84, 92, WS_TS, 1 << 20)
    SX, SCK, SUK, SUV, SG, SU = SA, SB, SC, SD, SE, SF
    srd(p, SX, 4, 0, 2048*512*2); srd(p, SCK, 6, 0, 2048*512*2); srd(p, SUK, 10, 0, 512*4096*2); srd(p, SUV, 12, 0, 512*4096*2)
    srd(p, SG, 18, 0, 512*1376*2); srd(p, SU, 20, 0, 512*1376*2)
    p(f's_lshl_b32 s38, s{sH}, 8'); p(f's_lshl_b32 s39, s{sWave}, 16'); p(f's_add_u32 s{sWoff}, s38, s39')
    p(f's_lshl_b32 s38, s{sI}, 18'); p(f's_lshl_b32 s39, s{sWave}, 15'); p(f's_add_u32 s{sCoff}, s38, s39')
    p(f's_lshl_b32 s{sT}, s{sWave}, 11')
    sW1 = 99
    p(f's_lshl_b32 s38, s{sH}, 8'); p(f's_lshl_b32 s39, s{sWave}, 15'); p(f's_add_u32 s{sW1}, s38, s39')
    SWQ = SA
    def itemsW(g):
        srdn = SUK if g < 8 else (SUV if g < 16 else SWQ)
        return [([f's_add_u32 m0, s{sT}, {(g % 4) * 16384}', f's_add_u32 s38, s{sWoff}, {(g % 8) * 64 * 8192}'],
                 f'buffer_load_dwordx4 v{vWD+tt}, s[{srdn}:{srdn+3}], s38 offen offset:{tt*1024} lds', f'W{g}') for tt in range(2)]
    def items1(g):
        b = SLOT1(g)
        it = [([f's_add_u32 m0, s{sCl}, {b}', f's_add_u32 s38, s{sCoff}, {g * 64}'],
               f'buffer_load_dwordx4 v{vCD+t}, s[{SCK}:{SCK+3}], s38 offen offset:{t*1024} lds', f'H{g}') for t in range(2)]
        for part, srdn in ((0, SUK), (1, SUV)):
            it.append(([f's_lshr_b32 s39, s{sCl}, 1', f's_add_u32 m0, s39, {b + 16384 + part * 8192}', f's_add_u32 s38, s{sW1}, {g * 32 * 8192}'],
                       f'buffer_load_dwordx4 v{vWD}, s[{srdn}:{srdn+3}], s38 offen lds', f'H{g}'))
        return it
    def emit_items(items):
        for pre, ins, tok in items:
            for x in pre: p(x)
            p(ins, tokdef=tok)
    def dmaW(g): emit_items(itemsW(g))
    sXv = 97
    p(f's_getreg_b32 s{sXv}, hwreg(HW_REG_XCC_ID, 0, 4)')
    p('v_mov_b32 v22, 0'); p('v_mov_b32 v23, 0')
    X = 64
    p(f's_lshl_b32 s40, s2, 3'); p(f's_add_u32 s40, s40, s{sWave}'); p(f's_lshl_b32 s41, s40, 10')
    p(f'buffer_load_dwordx4 {vr(X,4)}, v{vL16}, s[{SX}:{SX+3}], s41 offen')
    G = 96
    p('s_lshr_b32 s42, s2, 3'); p('s_and_b32 s43, s2, 7'); p('s_lshl_b32 s43, s43, 6')
    p('s_mul_i32 s44, s42, 3'); p('s_lshl_b32 s45, s42, 1'); p('s_add_u32 s45, s45, 22'); p('s_cmp_lt_u32 s42, 22'); p('s_cselect_b32 s44, s44, s45')
    p('s_lshl_b32 s45, s42, 9'); p('s_add_u32 s45, s45, s43'); p('s_mul_i32 s45, s45, 192'); p(f's_add_u32 s45, s45, {WS_GU}')
    p('s_mov_b32 s46, 43691')
    for j in range(2):
        b = G + 16 * j
        p(f's_lshl_b32 s38, s{sWave}, 6'); p(f's_add_u32 s38, s38, {512*j}'); p(f'v_add_u32 v{b}, s38, v{vL}')
        p(f'v_mul_lo_u32 v{b+1}, v{b}, s46'); p(f'v_lshrrev_b32 v{b+1}, 19, v{b+1}')
        p(f'v_mul_u32_u24 v{b+2}, 12, v{b+1}'); p(f'v_sub_u32 v{b+2}, v{b}, v{b+2}')
        p(f'v_add_u32 v{b+1}, s43, v{b+1}'); p(f'v_mul_u32_u24 v{b+1}, 2752, v{b+1}')
        p(f'v_lshrrev_b32 v{b+3}, 2, v{b+2}'); p(f'v_add_u32 v{b+3}, s44, v{b+3}'); p(f'v_lshlrev_b32 v{b+3}, 5, v{b+3}')
        p(f'v_and_b32 v{b+4}, 1, v{b+2}'); p(f'v_lshlrev_b32 v{b+4}, 4, v{b+4}')
        p(f'v_add3_u32 v{b+1}, v{b+1}, v{b+3}, v{b+4}')
        p(f'v_mov_b32 v{b+5}, 0x7fffff00')
        p(f'v_cmp_gt_u32 vcc, 768, v{b}'); p(f'v_cndmask_b32 v{b+1}, v{b+5}, v{b+1}, vcc')
        p(f'v_lshlrev_b32 v{b}, 4, v{b}'); p(f'v_cndmask_b32 v{b}, v{b+5}, v{b}, vcc')
        p(f'v_and_b32 v{b+2}, 2, v{b+2}'); p(f'v_cmp_eq_u32 vcc, 0, v{b+2}')
        p(f'v_cndmask_b32 v{b+3}, v{b+5}, v{b+1}, vcc'); p(f'v_cndmask_b32 v{b+4}, v{b+1}, v{b+5}, vcc')
        p(f'buffer_load_dwordx4 {vr(b+8,4)}, v{b+3}, s[{SG}:{SG+3}], 0 offen')
        p(f'buffer_load_dwordx4 {vr(b+12,4)}, v{b+4}, s[{SU}:{SU+3}], 0 offen')
    emit_items(items1(0))
    early = []
    def wave_sum_i(v, t):
        nonlocal early
        for m in (0x041F, 0x081F, 0x101F, 0x201F, 0x401F):
            p(f'ds_swizzle_b32 v{t}, v{v} offset:0x{m:04X}')
            if early: emit_items([early.pop(0)])
            p(f'v_add_f32 v{v}, v{v}, v{t}')
        p(f'v_mov_b32 v{t}, v{v}')
        if early: emit_items([early.pop(0)])
        p(f'v_permlane32_swap_b32 v{v}, v{t}')
        p(f'v_add_f32 v{v}, v{v}, v{t}')
    F = 72
    for j in range(4):
        p(f'v_lshlrev_b32 v{F+2*j}, 16, v{X+j}'); p(f'v_and_b32 v{F+2*j+1}, 0xffff0000, v{X+j}')
    p(f'v_add_f32 v{t0}, v{F}, v{F+1}')
    for j in range(2, 8): p(f'v_add_f32 v{t0}, v{t0}, v{F+j}')
    wave_sum_i(t0, t1)
    p(f'v_mul_f32 v{t0}, 0x{f2u(1/512):08x}, v{t0}')
    for j in range(8): p(f'v_sub_f32 v{F+j}, v{F+j}, v{t0}')
    p(f'v_mul_f32 v{t2}, v{F}, v{F}')
    for j in range(1, 8): p(f'v_fmac_f32 v{t2}, v{F+j}, v{F+j}')
    early = items1(1)
    wave_sum_i(t2, t1)
    emit_items(early)
    p(f'v_mov_b32 v{t3}, 0x{f2u(1e-5):08x}')
    p(f'v_fmac_f32 v{t3}, 0x{f2u(1/512):08x}, v{t2}')
    p(f'v_rsq_f32 v{t3}, v{t3}')
    for j in range(8): p(f'v_mul_f32 v{F+j}, v{F+j}, v{t3}')
    for j in range(4): p(f'v_cvt_pk_bf16_f32 v{X+j}, v{F+2*j}, v{F+2*j+1}')
    p(f'v_lshlrev_b32 v{t0}, 7, v{vL}'); p(f's_lshl_b32 s38, s{sWave}, 4'); p('s_add_u32 s38, s38, 98304'); p(f'v_add_u32 v{t0}, s38, v{t0}')
    p(f'ds_write_b128 v{t0}, {vr(X,4)}')
    for j in range(2):
        b = G + 16 * j
        for q in range(4): p(f'v_or_b32 v{b+8+q}, v{b+8+q}, v{b+12+q}')
        p(f'buffer_store_dwordx4 {vr(b+8,4)}, v{b}, s[{WS}:{WS+3}], s45 offen{SC1}')
    p(f'v_mov_b32 v{t1}, 0x7fffff00'); p(f's_lshl_b32 s40, s2, 7'); p(f's_add_u32 s40, s40, {WS_CNT}'); p(f'v_mov_b32 v{t2}, s40')
    p('s_cmp_lt_u32 s2, 128'); p('s_cselect_b32 s41, 1, 0'); p(f'v_cmp_gt_u32 vcc, s41, v0'); p(f'v_cndmask_b32 v{t2}, v{t1}, v{t2}, vcc')
    p(f'v_mov_b32 v{t3}, 0'); p(f'buffer_store_dword v{t3}, v{t2}, s[{WS}:{WS+3}], 0 offen{SC1}')
    srd(p, SWQ, 8, 0, 512*4096*2)
    p(f'v_lshlrev_b32 v26, 7, v{vL}')
    p(f'v_lshrrev_b32 v27, 3, v{vL}'); p('v_lshlrev_b32 v27, 13, v27'); p(f'v_and_b32 v3, 7, v{vL}'); p('v_lshlrev_b32 v3, 7, v3'); p('v_add_u32 v27, v27, v3')
    def itemsPFc():
        return [(['s_lshr_b32 s38, s2, 3', 's_lshl_b32 s38, s38, 16', f's_lshl_b32 s39, s{sWave}, 13', 's_add_u32 s38, s38, s39'],
                 f'buffer_load_dword v3, v26, s[{SCK}:{SCK+3}], s38 offen', None)]
    def itemsPFx():
        return [([f's_lshl_b32 s38, s{sR32}, 15', f's_and_b32 s39, s{sH}, 3', 's_lshl_b32 s39, s39, 13', 's_add_u32 s38, s38, s39', f's_add_u32 s38, s38, {WS_XN}'],
                 f'buffer_load_dword v3, v26, s[{WS}:{WS+3}], s38 offen sc1', None)]
    def itemsPFw(srdn, grp):
        lo = 0 if grp == 'A' else 4
        return [(['s_lshr_b32 s38, s2, 3', 's_lshl_b32 s38, s38, 4', f's_and_b32 s39, s{sWave}, 1', 's_lshl_b32 s39, s39, 3', 's_add_u32 s38, s38, s39', 's_lshl_b32 s38, s38, 13',
                  's_and_b32 s39, s2, 7', 's_lshl_b32 s39, s39, 10', 's_add_u32 s38, s38, s39',
                  f's_and_b32 s39, s{sWave}, 2', 's_cmp_eq_u32 s39, 0', f's_cselect_b32 s38, s38, s{sOOB}'],
                 f'buffer_load_dword v3, v27, s[{srdn}:{srdn+3}], s38 offen', None)]
    p(f's_mov_b32 s{sOOB}, 0x80000000')
    st(p, 0, t0)
    sG0, sGoff, sGl, sHoff = 40, 41, 42, 43
    p('s_sub_u32 s44, 15, s%d' % sI); p(f's_cmp_lt_u32 s{sWave}, 4'); p(f's_cselect_b32 s45, s{sI}, s44')
    p(f's_and_b32 s46, s{sWave}, 3'); p('s_lshl_b32 s38, s45, 2'); p(f's_add_u32 s{sR32}, s38, s46')
    p('s_lshl_b32 s38, s45, 1'); p(f's_add_u32 s{sNTw}, s38, 2')
    p('s_lshl_b32 s38, s44, 1'); p(f's_add_u32 s{sNT}, s38, 2')
    p(f's_mul_i32 s38, s{sH}, {512*192}'); p(f's_mul_i32 s39, s{sWave}, 3072'); p(f's_add_u32 s{sGoff}, s38, s39'); p(f's_add_u32 s{sGoff}, s{sGoff}, {WS_GU}'); p(f's_add_u32 s{sGl}, s39, 65536')
    p(f's_mul_i32 s38, s{sH}, 3'); p(f's_lshl_b32 s39, s{sH}, 1'); p('s_add_u32 s39, s39, 22'); p(f's_cmp_lt_u32 s{sH}, 22'); p(f's_cselect_b32 s{sG0}, s38, s39')
    p(f's_mul_i32 s38, s{sR32}, {NKS}'); p(f's_lshl_b32 s39, s{sH}, 3'); p('s_add_u32 s39, s38, s39'); p(f's_lshl_b32 s{sCtxOff}, s39, 10'); p(f's_add_u32 s{sCtxOff}, s{sCtxOff}, {WS_AF}')
    p(f's_add_u32 s38, s38, s{sG0}'); p('s_add_u32 s38, s38, 256'); p(f's_lshl_b32 s{sHoff}, s38, 10'); p(f's_add_u32 s{sHoff}, s{sHoff}, {WS_AF}')
    p(f's_lshl_b32 s38, s{sH}, 19'); p('s_lshl_b32 s39, s46, 12'); p('s_add_u32 s38, s38, s39')
    p(f's_add_u32 s{sKbase}, s38, {WS_KF}'); p(f's_add_u32 s{sVbase}, s38, {WS_VF}')
    p(f's_mov_b32 s{sKdl}, s39'); p(f's_add_u32 s{sVdl}, s39, {LDS_V}') if False else None
    p(f's_mov_b32 s44, s39')
    p(f's_lshl_b32 s38, s{sH}, 6'); p(f's_lshl_b32 s39, s{sI}, 3'); p('s_add_u32 s38, s38, s39'); p(f's_add_u32 s38, s38, s{sWave}')
    p(f's_lshl_b32 s{sOut}, s38, 13')
    def itemsG(c):
        return [([f's_add_u32 m0, s{sGl}, {c * 24576}', f's_add_u32 s38, s{sGoff}, {c * 24576}'],
                 f'buffer_load_dwordx4 v{vL16}, s[{WS}:{WS+3}], s38 offen offset:{j*1024} sc1 lds', f'G{c}') for j in range(3)]
    def itemsX(c):
        return [([f's_lshl_b32 s38, s{sR32}, 15', f's_add_u32 s38, s38, {WS_XN + c*4096}'],
                 f'buffer_load_dwordx4 {ar(4*(4*c+s),4)}, v{vL16}, s[{WS}:{WS+3}], s38 offen offset:{s*1024} sc1', None) for s in range(4)]
    PDW = 4
    NM = 24 * 16
    def wread(m):
        g, r = divmod(m, 16); s, n = divmod(r, 4)
        b = WF + 4 * (m % 8); off = (g % 4) * 16384 + s * 4096
        p(f'ds_read_b64_tr_b16 {vr(b,2)}, v{vW+n} offset:{off}')
        p(f'ds_read_b64_tr_b16 {vr(b+2,2)}, v{vW+n} offset:{off+1024}')
    def cread(c):
        for s in range(4): p(f'ds_read_b128 {ar(4*(4*c+s),4)}, v{vCR+s} offset:{(c % 3) * 4096}')
    def epi(part):
        for n in range(4):
            a = ACC + 16 * n
            for j in range(8): p(f'v_cvt_pk_bf16_f32 v{a+j}, v{a+2*j}, v{a+2*j+1}')
        def stores(fl):
            base = WS_KF if part == 0 else WS_VF
            for hi in range(2):
                p(f's_add_u32 s38, s{sOut}, {base + hi * 4096}')
                for q in range(4):
                    o = hi * 4 + q
                    if part == 0: n, half = o // 2, o % 2
                    else: half, n = o // 4, o % 4
                    p(f'buffer_store_dwordx4 {vr(ACC+16*n+4*half,4)}, v{vL16}, s[{WS}:{WS+3}], s38 offen offset:{q*1024}{fl}')
        dual(stores)
    vP, vPz = 22, 23
    def s1_arrive():
        p(f'v_mbcnt_lo_u32_b32 v{t0}, -1, 0'); p(f'v_mbcnt_hi_u32_b32 v{t0}, -1, v{t0}')
        p(f'v_cmp_eq_u32 vcc, 0, v{t0}'); p(f'v_mov_b32 v{t1}, 0x7fffff00'); p(f'v_cndmask_b32 v{t0}, v{t1}, v{t0}, vcc')
        p(f's_or_b32 s38, s{sXv}, 0x80'); p(f'v_mov_b32 v{t1}, s38')
        p(f'buffer_store_byte v{t1}, v{t0}, s[{DBG}:{DBG+3}], s2 offen sc1')
    def s1_issue():
        p(f'v_lshlrev_b32 v{vPz}, 2, v{vL}')
        p(f'buffer_load_dword v{vP}, v{vPz}, s[{DBG}:{DBG+3}], 0 offen sc1')
    def s1_test(L):
        p(f'v_and_b32 v{t0}, 0x80808080, v{vP}'); p(f'v_mov_b32 v{t1}, 0x80808080')
        p(f'v_cmp_ne_u32 vcc, v{t0}, v{t1}')
        p(f's_cmp_eq_u64 vcc, 0')
    def s1_check():
        lab[0] += 1; L = f'S1c{lab[0]}'
        s1_test(L); p(f's_cbranch_scc1 {L}_ok')
        p('s_mov_b32 s95, 0')
        p.label(f'{L}_sp')
        s1_issue(); s1_test(L); p(f's_cbranch_scc1 {L}_ok')
        p('s_add_u32 s95, s95, 1'); p(f's_cmp_lt_u32 s95, {SPIN_LIMIT}'); p(f's_cbranch_scc1 {L}_sp')
        p.label(f'{L}_ok')
        p('s_and_b32 s38, s2, 3'); p('s_lshl_b32 s38, s38, 3')
        p(f'v_lshrrev_b32 v{t0}, s38, v{vP}'); p(f'v_and_b32 v{t0}, 0x7f, v{t0}')
        p('s_bfe_u32 s39, s2, 0x10002')
        p(f'v_and_b32 v{t1}, 1, v{vL}'); p(f'v_cmp_eq_u32 s[94:95], s39, v{t1}')
        p(f'v_cmp_ne_u32 vcc, s{sXv}, v{t0}')
        p('s_and_b64 vcc, vcc, s[94:95]')
        p('s_cmp_eq_u64 vcc, 0'); p(f's_cselect_b32 s{sFast}, 1, 0')
        if FORCE: p(f's_mov_b32 s{sFast}, {1 if FORCE == "fast" else 0}')
    def dual(fn):
        lab[0] += 1; L = f'DU{lab[0]}'
        p(f's_cmp_eq_u32 s{sFast}, 0'); p(f's_cbranch_scc1 {L}s'); fn(''); p(f's_branch {L}j'); p.label(f'{L}s'); fn(' sc1'); p.label(f'{L}j')
    def itemsKV(which, t, tok):
        if which == 'K': pre = [f's_add_u32 m0, s44, {t*KSLOT}', f's_add_u32 s38, s{sKbase}, {t*16384}']
        else: pre = [f's_add_u32 m0, s44, {LDS_V + t*VSLOT}', f's_add_u32 s38, s{sVbase}, {t*16384}']
        return [(pre, f'buffer_load_dwordx4 v{vL16}, s[{WS}:{WS+3}], s38 offen offset:{j*1024} sc1 lds', tok) for j in range(4)]
    class VQ:
        def __init__(self, grp): self.q = []; self.par = 0 if grp == 'A' else 1
        def add(self, items, front=False):
            if front: self.q = items + self.q
            else: self.q += items
        def slot(self, n):
            if self.q and n % 2 == self.par: emit_items([self.q.pop(0)])
        def flush(self):
            emit_items(self.q); self.q = []
    sCn = 45
    p(f's_lshl_b32 s{sCn}, s{sH}, 7'); p(f's_add_u32 s{sCn}, s{sCn}, {CNT_S2}')
    sS, sRB, sCT, sQ0, sWo = 48, 49, 50, 51, 52
    SO, SDn = SC, SD
    SLOT3 = [114688, 131072, 147456, 98304]
    v3W, v3D = 4, 8
    def itemsW3(g, wv, tok=True):
        pre = [f's_add_u32 m0, s{wv}, {SLOT3[g % 4]}', f's_lshl_b32 s39, s{wv}, 2', f's_add_u32 s39, s39, s{sWo}']
        if g < 8: pre += [f's_lshl_b32 s38, s{sS}, 19', f's_add_u32 s38, s38, {g << 16}']; srdn = SO
        else: pre += [f's_lshl_b32 s38, s{sQ0}, 14', f's_add_u32 s38, s38, {(g - 8) << 16}']; srdn = SDn
        pre += ['s_add_u32 s38, s38, s39']
        return [(pre, f'buffer_load_dwordx4 v{v3D+tt}, s[{srdn}:{srdn+3}], s38 offen offset:{tt*1024} lds', f'X{g}' if tok else None) for tt in range(2)]
    def dmaW3(g, wv, tok=True): emit_items(itemsW3(g, wv, tok))
    def phase12(grp):
        vq = VQ(grp)
        def w0(fn):
            if grp == 'A': only('w0', fn)
        p('s_waitcnt lgkmcnt(0)')
        p.waittok('H0'); p('s_barrier')
        p(f's_lshl_b32 s38, s{sWave}, 10'); p('s_add_u32 s38, s38, 98304'); p(f'v_add_u32 v{t0}, s38, v{vL16}')
        p(f'ds_read_b128 v[28:31], v{t0}')
        p(f'v_lshrrev_b32 v{t0}, 3, v{vL}'); p(f'v_lshlrev_b32 v{t0}, 9, v{t0}'); p(f'v_and_b32 v{t1}, 7, v{vL}'); p(f'v_lshl_add_u32 v{t0}, v{t1}, 4, v{t0}')
        p('s_lshr_b32 s38, s2, 2'); p('s_lshl_b32 s38, s38, 15'); p('s_and_b32 s39, s2, 3'); p('s_lshl_b32 s39, s39, 7'); p('s_add_u32 s38, s38, s39')
        p(f's_lshl_b32 s39, s{sWave}, 12'); p('s_add_u32 s38, s38, s39'); p(f's_add_u32 s38, s38, {WS_XN}')
        p(f'buffer_store_dwordx4 v[28:31], v{t0}, s[{WS}:{WS+3}], s38 offen{SC1}', tokdef='LNST')
        st(p, 13, t0)
        vq.add(items1(2) + items1(3))
        if PF: vq.add(itemsPFc())
        CF, WF1 = 32, 48
        def cread1(g):
            for q in range(2): p(f'ds_read_b128 {vr(CF + 8*(g%2) + 4*q, 4)}, v{vCR+q}')
        def wread1(m):
            g, r = divmod(m, 16); q, part, n = r >> 3, (r >> 2) & 1, r & 3
            b = WF1 + 4 * (m % 8); off = part * 8192 + q * 4096
            p(f'ds_read_b64_tr_b16 {vr(b,2)}, v{vW1+n} offset:{off}')
            p(f'ds_read_b64_tr_b16 {vr(b+2,2)}, v{vW1+n} offset:{off+1024}')
        cread1(0)
        for m in range(PDW): wread1(m)
        vG = 24
        p(f'v_lshrrev_b32 v{t0}, 5, v{vL}'); p(f'v_lshlrev_b32 v{t0}, 3, v{t0}'); p(f'v_bfe_u32 v{t1}, v{vL}, 2, 2'); p(f'v_add_u32 v{t0}, v{t0}, v{t1}')
        p(f'v_mul_u32_u24 v{t0}, 192, v{t0}')
        p(f'v_bfe_u32 v{t1}, v{vL}, 4, 1'); p(f'v_lshlrev_b32 v{t1}, 5, v{t1}'); p(f'v_add_u32 v{t0}, v{t0}, v{t1}')
        p(f'v_and_b32 v{t1}, 3, v{vL}'); p(f'v_lshlrev_b32 v{t1}, 3, v{t1}'); p(f'v_add_u32 v{t0}, v{t0}, v{t1}')
        p(f'v_add_u32 v{vG}, 65536, v{t0}'); p(f'v_add_u32 v{vG+1}, {65536+49152}, v{t0}')
        def vadd(reg, d):
            p(f'v_add_u32 v{reg}, 0x{d & 0xffffffff:x}, v{reg}')
        for g in range(16):
            for r in range(16):
                m = g * 16 + r; q, part, n = r >> 3, (r >> 2) & 1, r & 3
                a = ar(64 * part + 16 * n, 16); wf = vr(WF1 + 4 * (m % 8), 4); cf = vr(CF + 8 * (g % 2) + 4 * q, 4)
                cin = a if not (g == 0 and q == 0) else '0'
                if part == 1: p(f'v_mfma_f32_32x32x16_bf16 {a}, {cf}, {wf}, {cin}')
                else: p(f'v_mfma_f32_32x32x16_bf16 {a}, {wf}, {cf}, {cin}')
                if r == 11 and g < 15:
                    toks = [f'H{g+1}'] + (['LNST'] if g == 3 else [])
                    p.waittok(*toks); p('s_barrier')
                    d = SLOT1(g + 1) - SLOT1(g)
                    for q2 in range(2): vadd(vCR + q2, d)
                    cread1(g + 1)
                    if g == 3: w0(s1_arrive)
                if m + PDW < 256 and not (r >= 12 and False):
                    if r == 12 and g < 15:
                        for n2 in range(4): vadd(vW1 + n2, SLOT1(g + 1) - SLOT1(g))
                    wread1(m + PDW)
                if r == 12:
                    if g + 4 < 16: vq.add(items1(g + 4))
                    if g == 12: vq.add(itemsW(16) + itemsW(17))
                    if g == 13: vq.add(itemsW(18))
                    if PF and g == 6 and grp == 'B': vq.add(itemsPFw(SWQ, grp))
                    if g == 8: s1_issue()
                    if g == 9: s1_check()
                    if PF and g == 10: vq.add(itemsPFx())
                vq.slot(m)
            if 'chst' in os.environ.get('FX', ''): st(p, 16 + g, t0)
        vq.flush()
        for t in range(8):
            T = 80 + 16 * (t % 2); P_ = 112 + 8 * (t % 2); part, n = divmod(t, 4)
            for j2 in range(16): p(f'v_accvgpr_read_b32 v{T+j2}, a{16*t+j2}')
            for j2 in range(8): p(f'v_cvt_pk_bf16_f32 v{P_+j2}, v{T+2*j2}, v{T+2*j2+1}')
            def stores(fl, t=t, P_=P_, part=part, n=n):
                for half in range(2):
                    o = ((2*n + half) if part == 0 else (half * 4 + n)) * 1024
                    p(f's_add_u32 s38, s{sOut}, {(WS_KF if part == 0 else WS_VF) + (o & ~4095)}')
                    p(f'buffer_store_dwordx4 {vr(P_+4*half,4)}, v{vL16}, s[{WS}:{WS+3}], s38 offen offset:{o & 4095}{fl}')
            dual(stores)
            if t < 3: emit_items(itemsX(t))
        for t in range(3, 8): vq.add(itemsX(t))
        st(p, 2, t0)
        p.waittok('W16'); p('s_barrier')
        for m in range(256, 256 + PDW): wread(m)
        for g in range(16, 24):
            c = g - 16
            for r in range(16):
                m = g * 16 + r; s, n = divmod(r, 4)
                a = vr(ACC + 16 * n, 16); wf = vr(WF + 4 * (m % 8), 4); cf = ar(4 * (4 * c + s), 4)
                cin = a if not (c == 0 and s == 0) else '0'
                p(f'v_mfma_f32_32x32x16_bf16 {a}, {wf}, {cf}, {cin}')
                if r == 16 - PDW - 1:
                    toks = [f'W{g+1}'] if g < 23 else ['G0', 'G1', 'G2', 'G3']
                    p.waittok(*toks); p('s_barrier')
                    if g == 18: w0(lambda: sy.arrive(WS, f's{sCn}', t0, t1))
                if m + PDW < NM: wread(m + PDW)
                if r == 16 - PDW:
                    if g + 3 < 24: vq.add(itemsW(g + 3), front=True)
                    if g == 20: w0(lambda: sy.poll_issue(WS, f's{sCn}', vP, vPz))
                    if g == 21: w0(lambda: sy.poll_check(WS, f's{sCn}', vP, vPz, 8))
                    if 16 <= g < 20: vq.add(itemsG(g - 16))
                    if g == 23 and grp == 'A':
                        vq.add(itemsKV('K', 0, 'K0') + itemsKV('K', 1, 'K1') + itemsKV('K', 2, 'K2'))
                vq.slot(m)
            if 'chst' in os.environ.get('FX', ''): st(p, 16 + g, t0)
        QP = [104, 108, 120, 124, 96, 100, 112, 116]
        for n in (2, 3, 0, 1):
            a = ACC + 16 * n
            for j in range(16): p(f'v_mul_f32 v{a+j}, 0x{f2u(QSCALE):08x}, v{a+j}')
            for j in range(8): p(f'v_cvt_pk_bf16_f32 v{QP[2*n] + j}, v{a+2*j}, v{a+2*j+1}')
        st(p, 3, t0)
        GA = [64, 80, 0]
        GA[2] = 4
        def gread(m, nt):
            per = 8 * nt; c, r = divmod(m, per); s, t = divmod(r, nt)
            b = WF + 4 * (m % 8); off = (c % 2) * 24576 + s * 3072 + t * 64; a = vG + c // 2
            p(f'ds_read_b64_tr_b16 {vr(b,2)}, v{a} offset:{off}')
            p(f'ds_read_b64_tr_b16 {vr(b+2,2)}, v{a} offset:{off+768}')
        def gu(nt):
            per = 8 * nt; tot = 4 * per
            vq.q = list(pend)
            for m in range(PDW): gread(m, nt)
            for m in range(tot):
                c, r = divmod(m, per); s, t = divmod(r, nt)
                a = vr(GA[t], 16); wf = vr(WF + 4 * (m % 8), 4); xf = ar(4 * (8 * c + s), 4)
                cin = a if not (c == 0 and s == 0) else '0'
                p(f'v_mfma_f32_32x32x16_bf16 {a}, {wf}, {xf}, {cin}')
                if r == per - PDW - 1 and c < 2: p('s_barrier')
                if m + PDW < tot: gread(m + PDW, nt)
                if r == per - PDW and c == 0 and grp == 'A': vq.add(itemsKV('V', 0, 'V0'))
                if r == per - PDW and c == 1 and grp == 'A': vq.add(itemsKV('V', 1, 'V1'))
                vq.slot(m)
            vq.flush()
            for t in range(nt):
                a = GA[t]
                for j in range(8):
                    T = WF + 4 * (j % 4)
                    p(f'v_mul_f32 v{T}, 0x{f2u(-1.4426950408889634):08x}, v{a+j}')
                    p(f'v_exp_f32 v{T}, v{T}')
                    p(f'v_mul_f32 v{T+1}, v{a+j}, v{a+8+j}')
                    p(f'v_add_f32 v{T}, 1.0, v{T}')
                    p(f'v_rcp_f32 v{T}, v{T}')
                    p(f'v_mul_f32 v{a+j}, v{T+1}, v{T}')
                for j in range(4): p(f'v_cvt_pk_bf16_f32 v{a+j}, v{a+2*j}, v{a+2*j+1}')
            def hst(fl):
                for t in range(nt): p(f'buffer_store_dwordx4 {vr(GA[t],4)}, v{vL16}, s[{WS}:{WS+3}], s{sHoff} offen offset:{t*1024}{fl}')
            dual(hst)
        pend = list(vq.q)
        p(f's_cmp_ge_u32 s{sH}, 22'); p(f's_cbranch_scc1 K2_gu2{grp}')
        gu(3); p(f's_branch K2_gud{grp}')
        p.label(f'K2_gu2{grp}'); gu(2)
        p.label(f'K2_gud{grp}')
        st(p, 4, t0)
        for s in range(8):
            for j in range(4): p(f'v_accvgpr_write_b32 a{AQ+4*s+j}, v{QP[s]+j}')
        p(f'v_mov_b32 v{VL16}, v{vL16}'); p(f'v_mov_b32 v{VDMA}, v{vL16}')
        p(f'v_and_b32 v3, 31, v{vL}'); p(f'v_lshrrev_b32 v4, 5, v{vL}'); p('v_lshlrev_b32 v4, 2, v4'); p('v_sub_u32 v3, v3, v4')
        p(f's_lshl_b32 s38, s{sR32}, 5'); p('v_add_u32 v3, s38, v3'); p('v_cvt_f32_i32 v3, v3'); p('v_add_f32 v3, 0.5, v3')
        p(f'v_mul_f32 v{VT}, 0x{f2u(BIG):08x}, v3')
        p(f'v_mov_b32 v{VK}, v{VL16}'); p(f'v_add_u32 v{VV}, {LDS_V}, v{VL16}')
        p(f's_mov_b32 s{sKdl}, s44'); p(f's_add_u32 s{sVdl}, s44, {LDS_V + 2*VSLOT}')
        p(f's_mov_b32 s{sKsl}, 0'); p(f's_mov_b32 s{sVsl}, {LDS_V}')
        p(f's_mov_b32 s{sThr}, 0x46800000'); p(f's_mov_b32 s{sOOB}, 0x80000000')
        p(f's_add_u32 s{sKbase}, s{sKbase}, {3*16384}'); p(f's_add_u32 s{sVbase}, s{sVbase}, {2*16384}')
        p(f's_mov_b32 s{sKt}, 3'); p(f's_mov_b32 s{sKdma}, s{sKbase}'); p(f's_mov_b32 s{sVdma}, s{sVbase}')
        p(f's_and_b32 s{sS}, s2, 7'); p(f's_lshr_b32 s{sRB}, s2, 5'); p(f's_lshr_b32 s{sCT}, s2, 3'); p(f's_and_b32 s{sCT}, s{sCT}, 3')
        p(f's_lshl_b32 s38, s{sS}, 2'); p('s_mul_i32 s39, s38, 3'); p('s_lshl_b32 s53, s38, 1'); p('s_add_u32 s53, s53, 22'); p('s_cmp_lt_u32 s38, 22'); p(f's_cselect_b32 s{sQ0}, s39, s53')
        p(f's_lshl_b32 s{sWo}, s{sCT}, 8')
        srd(p, SO, 14, 0, 4096*512*2); srd(p, SDn, 22, 0, 1376*512*2)
        wtr_addr_setup(p, v3W, vL, 12, 13, True)
        wdma_addr_setup(p, v3D, vL, 12, 13, 1024)
    G3 = {}
    p(f's_cmp_ge_u32 s{sWave}, 4'); p('s_cbranch_scc1 K2_B')
    phase12('A')
    attention(p, True, 'A', tokwait=True)
    p(f's_sub_u32 s{sIt}, s{sNT}, s{sNTw}')
    dma_group(p); dma_advance(p)
    epilogue(p, dual)
    p('s_waitcnt vmcnt(16)'); p('s_barrier')
    dma_group(p); dma_advance(p)
    p(f's_lshl_b32 s53, s{sWave}, 11'); p('s_add_u32 s54, s53, 8192')
    for g in range(3):
        dmaW3(g, 53, tok=False); dmaW3(g, 54, tok=False)
    npf = 0
    if PF:
        p(f'v_lshlrev_b32 v{T2}, 7, v{vL}'); p('s_lshr_b32 s38, s2, 3'); p('s_lshl_b32 s39, s38, 14'); p(f's_lshl_b32 s55, s{sS}, 19'); p('s_add_u32 s39, s39, s55')
        p(f's_and_b32 s55, s{sWave}, 1'); p('s_lshl_b32 s55, s55, 13'); p('s_add_u32 s39, s39, s55')
        p(f'buffer_load_dword v{T3}, v{T2}, s[{SO}:{SO+3}], s39 offen')
        p('s_mul_i32 s39, s38, 6144'); p(f's_lshl_b32 s55, s{sQ0}, 14'); p('s_add_u32 s39, s39, s55')
        p(f'buffer_load_dword v{T3}, v{T2}, s[{SDn}:{SDn+3}], s39 offen')
        npf = 2
    p(f's_waitcnt vmcnt({20 + npf})'); p('s_barrier')
    p(f's_lshr_b32 s55, s{sI}, 1'); p(f's_lshl_b32 s38, s{sS}, 3'); p('s_add_u32 s55, s55, s38'); p('s_lshl_b32 s55, s55, 7'); p(f's_add_u32 s55, s55, {CNT_S3}')
    only('w0', lambda: sy.arrive(WS, 's55', T0, T1))
    p(f's_sub_u32 s{sIt}, s{sIt}, 2'); p(f's_cmp_eq_u32 s{sIt}, 0'); p('s_cbranch_scc1 A_done')
    p.label('A_ld')
    dma_group(p); dma_advance(p)
    p('s_waitcnt vmcnt(8)'); p('s_barrier')
    p(f's_sub_u32 s{sIt}, s{sIt}, 1'); p(f's_cmp_lg_u32 s{sIt}, 0'); p('s_cbranch_scc1 A_ld')
    p.label('A_done')
    p('s_branch K3_start')
    rare_paths(p, 'A')
    p.label('K2_B')
    phase12('B')
    attention(p, False, 'B')
    st(p, 5, 100)
    epilogue(p, dual)
    p('s_branch K3_start')
    rare_paths(p, 'B')
    p.label('K3_start')
    p('s_waitcnt vmcnt(0)'); p('s_barrier')
    st(p, 6, 100)
    def s3():
        p(f's_sub_u32 s55, 15, s{sI}'); p('s_lshr_b32 s55, s55, 1'); p(f's_lshl_b32 s38, s{sS}, 3'); p('s_add_u32 s55, s55, s38'); p('s_lshl_b32 s55, s55, 7'); p(f's_add_u32 s55, s55, {CNT_S3}')
        sy.arrive(WS, 's55', 16, 17)
        p(f's_lshl_b32 s38, s{sS}, 3'); p(f's_add_u32 s55, s{sRB}, s38'); p('s_lshl_b32 s55, s55, 7'); p(f's_add_u32 s55, s55, {CNT_S3}')
        sy.spin(WS, 's55', 16, 17, 8)
    only('w0', s3)
    p('s_barrier')
    sAoff, sT3, sR3, sAh = 53, 54, 64, 55
    p(f's_lshl_b32 s38, s{sRB}, 3'); p(f's_add_u32 s{sR3}, s38, s{sWave}'); p(f's_mul_i32 s38, s{sR3}, {NKS}')
    p(f's_lshl_b32 s39, s{sS}, 5'); p('s_add_u32 s39, s39, s38'); p(f's_lshl_b32 s{sAoff}, s39, 10'); p(f's_add_u32 s{sAoff}, s{sAoff}, {WS_AF}')
    p(f's_add_u32 s39, s38, s{sQ0}'); p('s_add_u32 s39, s39, 256'); p(f's_lshl_b32 s{sAh}, s39, 10'); p(f's_add_u32 s{sAh}, s{sAh}, {WS_AF}')
    p(f's_lshl_b32 s{sT3}, s{sWave}, 11')
    def itemsA(g):
        it = []
        for q in range(4):
            pre = [f's_add_u32 s38, s{sAoff}, {g*4096}'] if g < 8 else [f's_add_u32 s38, s{sAh}, {(g-8)*4096}']
            if g == 10:
                pre += [f's_cmp_lt_u32 s{sS}, {5 if q >= 2 else 6}', f's_cselect_b32 s38, s38, s{sOOB}']
            it.append((pre, f'buffer_load_dwordx4 {ar(16*(g%4)+4*q,4)}, v{vL16}, s[{WS}:{WS+3}], s38 offen offset:{q*1024} sc1', None))
        return it
    for c in range(3): emit_items(itemsA(c))
    st(p, 7, 100)
    NCH = 11
    for n in range(4): p(f'v_add_u32 v{v3W+n}, 98304, v{v3W+n}')
    def wread3(m):
        g, r = divmod(m, 16); s, n = divmod(r, 4)
        b = WF + 4 * (m % 8); off = SLOT3[g % 4] - 98304 + s * 4096
        p(f'ds_read_b64_tr_b16 {vr(b,2)}, v{v3W+n} offset:{off}')
        p(f'ds_read_b64_tr_b16 {vr(b+2,2)}, v{v3W+n} offset:{off+2048}')
    def phase3(grp):
        vq = VQ(grp)
        for m in range(PDW): wread3(m)
        for g in range(NCH):
            for r in range(16):
                m = g * 16 + r; s, n = divmod(r, 4)
                a = vr(ACC + 16 * n, 16); wf = vr(WF + 4 * (m % 8), 4); xf = ar(16 * (g % 4) + 4 * s, 4)
                cin = a if not (g == 0 and s == 0) else '0'
                p(f'v_mfma_f32_32x32x16_bf16 {a}, {wf}, {xf}, {cin}')
                if r == 16 - PDW - 1 and g < NCH - 1:
                    if g + 1 >= 3: p.waittok(f'X{g+1}')
                    p('s_barrier')
                if m + PDW < NCH * 16: wread3(m + PDW)
                if r == 16 - PDW and g + 3 < NCH: vq.add(itemsW3(g + 3, sT3), front=True)
                if r == 15 and g + 3 < NCH: vq.add(itemsA(g + 3))
                vq.slot(m)
            if g == 9:
                p(f's_cmp_ge_u32 s{sS}, 6'); p('s_cbranch_scc1 K3_epi')
        p('s_branch K3_epi')
    p(f's_cmp_ge_u32 s{sWave}, 4'); p('s_cbranch_scc1 K3_B')
    phase3('A')
    p.label('K3_B')
    phase3('B')
    p.label('K3_epi')
    p(f's_lshl_b32 s38, s{sS}, 6'); p(f's_add_u32 s38, s38, s{sR3}'); p('s_lshl_b32 s38, s38, 4'); p(f's_lshl_b32 s39, s{sCT}, 2'); p('s_add_u32 s38, s38, s39'); p('s_lshl_b32 s38, s38, 11')
    p(f's_add_u32 s38, s38, {WS_PT}')
    for n in range(4):
        a = ACC + 16 * n
        for j in range(8): p(f'v_cvt_pk_bf16_f32 v{a+j}, v{a+2*j}, v{a+2*j+1}')
        if n == 2: p('s_add_u32 s38, s38, 4096')
        for half in range(2): p(f'buffer_store_dwordx4 {vr(a+4*half,4)}, v{vL16}, s[{WS}:{WS+3}], s38 offen offset:{(n%2)*2048+half*1024}{SC1}')
    st(p, 8, 100)
    SX4, SO4 = SA, SB
    p(f's_mov_b32 s53, s{sS}'); p(f's_mov_b32 s54, s{sRB}'); p(f's_mov_b32 s55, s{sCT}')
    srd(p, SX4, 4, 0, 2048*512*2)
    srd(p, 72, 24, 0, 2048*512*2)
    p('s_lshl_b32 s38, s54, 3'); p('s_add_u32 s40, s38, s53')
    p('s_lshl_b32 s38, s55, 2'); p(f's_and_b32 s39, s{sWave}, 3'); p('s_add_u32 s41, s38, s39')
    p(f's_lshr_b32 s42, s{sWave}, 2')
    p('s_lshl_b32 s38, s40, 15'); p('s_lshl_b32 s39, s41, 6'); p('s_add_u32 s43, s38, s39'); p('s_lshl_b32 s39, s42, 5'); p('s_add_u32 s43, s43, s39')
    p(f'v_and_b32 v3, 31, v{vL}'); p('v_lshlrev_b32 v3, 10, v3'); p(f'v_lshrrev_b32 v4, 5, v{vL}'); p('v_lshlrev_b32 v4, 3, v4'); p('v_add_u32 v3, v3, v4')
    for g in range(2): p(f'buffer_load_dwordx2 {vr(8+2*g,2)}, v3, s[{SX4}:{SX4+3}], s43 offen offset:{g*16}')
    p('s_waitcnt vmcnt(0)'); p('s_barrier')
    st(p, 11, 100)
    def s4():
        p('s_lshl_b32 s38, s54, 2'); p('s_add_u32 s38, s38, s55'); p('s_lshl_b32 s44, s38, 7'); p(f's_add_u32 s44, s44, {CNT_S4}')
        sy.arrive(WS, 's44', 16, 17)
        sy.spin(WS, 's44', 16, 17, 8)
    only('w0', s4)
    p('s_barrier')
    st(p, 12, 100)
    p('s_lshl_b32 s38, s40, 4'); p('s_add_u32 s38, s38, s41'); p('s_lshl_b32 s38, s38, 11'); p('s_lshl_b32 s39, s42, 10'); p('s_add_u32 s38, s38, s39'); p(f's_add_u32 s38, s38, {WS_PT}')
    for s in range(8):
        p(f'buffer_load_dwordx4 {vr(16+4*s,4)}, v{vL16}, s[{WS}:{WS+3}], s38 offen sc1')
        if s < 7: p(f's_add_u32 s38, s38, {64*16*2048}')
    A = 64
    for j in range(4):
        p(f'v_lshlrev_b32 v{A+2*j}, 16, v{8+j}'); p(f'v_and_b32 v{A+2*j+1}, 0xffff0000, v{8+j}')
    for s in range(8):
        for j in range(4):
            src = 16 + 4 * s + j
            p(f'v_lshlrev_b32 v5, 16, v{src}'); p(f'v_and_b32 v6, 0xffff0000, v{src}')
            p(f'v_add_f32 v{A+2*j}, v{A+2*j}, v5'); p(f'v_add_f32 v{A+2*j+1}, v{A+2*j+1}, v6')
    for j in range(4): p(f'v_cvt_pk_bf16_f32 v{8+j}, v{A+2*j}, v{A+2*j+1}')
    for g in range(2): p(f'buffer_store_dwordx2 {vr(8+2*g,2)}, v3, s[72:75], s43 offen offset:{g*16}')
    st(p, 9, 100); stamp_real(p, 10, sWave, 100)
    p.label('K_end'); p('s_endpgm')
    for i in p.ins:
        if 'sc1_ATOM' in i.text: i.text = i.text.replace('sc1_ATOM', 'sc1')
    p.finalize()
    return p

if __name__ == '__main__':
    out = [a for a in sys.argv[1:] if not a.startswith('-')][0]
    p = build()
    hdr = open('parallel_sum__compressed_kv_cla__swiglu_ffn__prompt.s.ref').read().split('; Override')[0]
    if '-l' in sys.argv: s = hdr + f'; @launch kernel={NAME} grid=(256,1,1) block=(512,1,1) lds=163840\n'
    else: s = hdr + f'; @launch grid=(256,1,1) block=(512,1,1) lds=163840\n'
    s += '.amdgcn_target "amdgcn-amd-amdhsa--gfx950"\n' + kernel_head(NAME) + p.text() + kernel_desc(NAME, 128, 128)
    open(out, 'w').write(s)
    print('written', out, len(s), 'instrs', len(p.ins))
```

```python
from asm import *
from common import *

S = [16, 32]
NEGM = 48
P = [64, 72]
E = 80
LS = 88
LRUN = 89
VK, VKN, VV = 90, 91, 92
VL16 = 93
VT = 94
T0, T1, T2, T3 = 95, 96, 97, 98
VDMA = 99
AO, AQ, AF = 0, 64, 96
import os
PD = int(os.environ.get('PD', 6))
GRP = int(os.environ.get('GRP', 1))
EXPT = os.environ.get('EXPT', '')
PD0 = 5

KSLOT, VSLOT = 16384, 16384
LDS_K, LDS_V = 0, 49152
NK, NV = 3, 4

sKsl, sVsl = 40, 41
sIt = 42
sKdma, sVdma = 43, 44
sKdl, sVdl = 45, 46
sThr = 47
sSRDK, sSRDV = 28, 28
sTmp = 56
sMaskU = 57

def frag(n): return ar(AF + 4 * (n % 8), 4)

def frag_read(p, gslot):
    n = gslot
    if n >= 32:
        s = n - 32
        assert s < 8
        p(f'ds_read_b128 {frag(n)}, v{VK} offset:{s*1024}')
        return
    per, s = n // 16, n % 16
    if s < 8:
        p(f'ds_read_b128 {frag(n)}, v{VK} offset:{(per*8+s)*1024}')
    else:
        p(f'ds_read_b128 {frag(n)}, v{VV} offset:{(per*8+s-8)*1024}')

def dma_ops(which):
    o = []
    if 'nodma' in EXPT: return [[], [], [], [], []]
    if which == 'K':
        o.append([f's_mov_b32 m0, s{sKdl}'])
        for j in range(4): o.append([(f'buffer_load_dwordx4 v{VDMA}, s[{sSRDK}:{sSRDK+3}], s{sKdma} offen offset:{j*1024} sc1 lds', 'K')])
    else:
        o.append([f's_mov_b32 m0, s{sVdl}'])
        for j in range(4): o.append([(f'buffer_load_dwordx4 v{VDMA}, s[{sSRDV}:{sSRDV+3}], s{sVdma} offen offset:{j*1024} sc1 lds', 'V')])
    return o

def period(p, par, qk=True, sm=True, pv=True, masked=False, gbase=0, reads=True, rare=None, next_reads=True, hooks=None, tail=None, early=True):
    sn, so = S[par], S[1 - par]
    pn, po = P[1 - par], P[par]
    fill = [[] for _ in range(16)]
    if sm:
        for r in range(2, 16): fill[r - 2].append(f'v_exp_f32 v{E + r % 8}, v{so + r}')
        for r in range(1, 16):
            if r == 1: fill[0].append(f'v_add_f32 v{LS}, v{E}, v{E+1}')
            else: fill[r - 1].append(f'v_add_f32 v{LS}, v{LS}, v{E + r % 8}')
        for k in range(8): fill[2 * k].append(f'v_cvt_pk_bf16_f32 v{pn + k}, v{E + (2*k) % 8}, v{E + (2*k+1) % 8}')
        fill[15].append(f'v_cmp_lt_f32 vcc, s{sThr}, v{LS}')
    if early:
        fill[14].append(f'v_exp_f32 v{E}, v{sn}')
        fill[15].insert(0, f'v_exp_f32 v{E+1}, v{sn+1}')
    hooks = hooks or {}
    def emit(lst):
        for x in lst:
            if isinstance(x, tuple): p(x[0], tokdef=x[1])
            else: p(x)
    for s in range(16):
        g = gbase + s
        if masked and qk and s == 0:
            mask_init(p, par, sMaskU)
        xu = [frag(g + j) for j in range(1, GRP)] if g % GRP == 0 else None
        if s < 8:
            if qk:
                c = vr(sn, 16) if (s > 0 or masked) else vr(NEGM, 16)
                p(f'v_mfma_f32_32x32x16_bf16 {vr(sn,16)}, {frag(g)}, {ar(AQ+4*s,4)}, {c}', xuse=xu)
        else:
            if pv:
                ks, dt = (s - 8) // 4, (s - 8) % 4
                p(f'v_mfma_f32_32x32x16_bf16 {ar(AO+16*dt,16)}, {frag(g)}, {vr(po+4*ks,4)}, {ar(AO+16*dt,16)}', xuse=xu)
        emit(hooks.get(g, {}).get('pre', []))
        if reads and g % GRP == 0 and 'noread' not in EXPT:
            for j in range(GRP):
                ng = g + PD + j
                if ng < 32:
                    ok = reads(ng // 16, ng % 16) if callable(reads) else True
                else:
                    ok = next_reads
                if ok: frag_read(p, ng)
        for f in fill[s]:
            if 'noadd' in EXPT and f.startswith('v_add'): continue
            if 'noexp' in EXPT and f.startswith('v_exp'): continue
            if 'nocvt' in EXPT and f.startswith('v_cvt'): continue
            p(f)
        emit(hooks.get(g, {}).get('post', []))
    if sm:
        if rare: p(f's_cbranch_vccnz {rare}')
        if rare: p.label(rare + '_ret')
        p(f'v_add_f32 v{LRUN}, v{LRUN}, v{LS}')

BIG = 2.0 ** 90

def mask_init2(p, sb):
    for r in range(16):
        c = (r >> 2) * 8 + (r & 3)
        if c == 0: p(f'v_min_f32 v{S[sb]+r}, v{VT}, v{NEGM+r}')
        else:
            p(f'v_add_f32 v{S[sb]+r}, 0x{f2u(-c*BIG):08x}, v{VT}')
            p(f'v_min_f32 v{S[sb]+r}, v{S[sb]+r}, v{NEGM+r}')
    p(f'v_add_f32 v{VT}, 0x{f2u(-32*BIG):08x}, v{VT}')
def mask_init(p, sb, _u): mask_init2(p, sb)

def rowmax(p, sb, dst):
    b = S[sb]
    p(f'v_max3_f32 v{dst}, v{b}, v{b+1}, v{b+2}')
    for r in range(3, 15, 2): p(f'v_max3_f32 v{dst}, v{dst}, v{b+r}, v{b+r+1}')
    p(f'v_max_f32 v{dst}, v{dst}, v{b+15}')
    p(f'v_mov_b32 v{T3}, v{dst}')
    p(f'v_permlane32_swap_b32 v{dst}, v{T3}')
    p(f'v_max_f32 v{dst}, v{dst}, v{T3}')

def sm_plain(p, sb, pb):
    so = S[sb]; pn = P[pb]
    for r in range(0, 16, 2):
        p(f'v_exp_f32 v{E}, v{so+r}')
        p(f'v_exp_f32 v{E+1}, v{so+r+1}')
        if r == 0: p(f'v_add_f32 v{LS}, v{E}, v{E+1}')
        else:
            p(f'v_add_f32 v{LS}, v{LS}, v{E}')
            p(f'v_add_f32 v{LS}, v{LS}, v{E+1}')
        p(f'v_cvt_pk_bf16_f32 v{pn + r//2}, v{E}, v{E+1}')

def rare_path(p, label, par):
    p.label(label)
    rowmax(p, 1 - par, T1)
    p(f'v_max_f32 v{T1}, 0, v{T1}')
    p(f'v_exp_f32 v{T2}, -v{T1}')
    for r in range(16):
        p(f'v_sub_f32 v{S[1-par]+r}, v{S[1-par]+r}, v{T1}')
        p(f'v_sub_f32 v{S[par]+r}, v{S[par]+r}, v{T1}')
        p(f'v_sub_f32 v{NEGM+r}, v{NEGM+r}, v{T1}')
    p(f'v_mul_f32 v{LRUN}, v{LRUN}, v{T2}')
    for r in range(64):
        p(f'v_accvgpr_read_b32 v{E + r % 4}, a{AO+r}')
        p(f'v_mul_f32 v{E + r % 4}, v{E + r % 4}, v{T2}')
        p(f'v_accvgpr_write_b32 a{AO+r}, v{E + r % 4}')
    sm_plain(p, 1 - par, 1 - par)
    p(f'v_exp_f32 v{E}, v{S[par]}')
    p(f'v_exp_f32 v{E+1}, v{S[par]+1}')
    p(f's_branch {label}_ret')

def _unused_iter_head(p, loader, wait):
    if loader: p(f's_waitcnt vmcnt({wait})')
    p('s_barrier')

def adv_k():
    return [f's_add_u32 s{sKsl}, s{sKsl}, {KSLOT}', f's_cmp_eq_u32 s{sKsl}, {NK*KSLOT}', f's_cselect_b32 s{sKsl}, 0, s{sKsl}',
            f'v_add_u32 v{VK}, s{sKsl}, v{VL16}']
def adv_v():
    return [f's_add_u32 s{sVsl}, s{sVsl}, {VSLOT}', f's_cmp_eq_u32 s{sVsl}, {LDS_V + NV*VSLOT}', f's_cselect_b32 s{sVsl}, {LDS_V}, s{sVsl}',
            f'v_add_u32 v{VV}, s{sVsl}, v{VL16}']
def dma_adv():
    return [f's_add_u32 s{sKt}, s{sKt}, 1',
    f's_add_u32 s{sKbase}, s{sKbase}, 16384',
    f's_cmp_lt_u32 s{sKt}, s{sNT}',
    f's_cselect_b32 s{sKdma}, s{sKbase}, s{sOOB}',
    f's_add_u32 s{sVbase}, s{sVbase}, 16384',
    f's_cmp_le_u32 s{sKt}, s{sNT}',
    f's_cselect_b32 s{sVdma}, s{sVbase}, s{sOOB}',
    f's_add_u32 s{sKdl}, s{sKdl}, {KSLOT}',
    f's_cmp_ge_u32 s{sKdl}, {NK*KSLOT}',
    f's_cselect_b32 s{sTmp}, {NK*KSLOT}, 0',
    f's_sub_u32 s{sKdl}, s{sKdl}, s{sTmp}',
    f's_add_u32 s{sVdl}, s{sVdl}, {VSLOT}',
    f's_cmp_ge_u32 s{sVdl}, {LDS_V + NV*VSLOT}',
    f's_cselect_b32 s{sTmp}, {NV*VSLOT}, 0',
    f's_sub_u32 s{sVdl}, s{sVdl}, s{sTmp}']
def dma_advance(p):
    for x in dma_adv(): p(x)
sKt, sNT, sKbase, sVbase, sOOB = 58, 59, 60, 61, 62
sNTw, sR32, sCtxOff = 63, 64, 66
sWave, sH, sI = 3, 33 + 3, 37
STSC = ' sc1'
def _stsc():
    import attn
    return attn.STSC
sSRDC = 28

def dma_group(p):
    for grp in dma_ops('K') + dma_ops('V'):
        for x in grp:
            if isinstance(x, tuple): p(x[0])
            else: p(x)

def iteration(p, loader, masked=False, final=False, rare=None, loop=None):
    BS = 32 - PD
    hooks = {g: {'pre': [], 'post': []} for g in range(32)}
    if loader:
        d = dma_ops('K') + dma_ops('V')
        sl = [1, 3, 5, 7, 9, 11, 13, 15, 17, 19]
        for g, grp in zip(sl, d): hooks[g]['post'] += grp
        adv = dma_adv()
        for n, x in enumerate(adv): hooks[20 + n // 3]['post'].append(x)
    kadv = adv_k(); vadv = adv_v()
    hooks[24 - PD + 1]['post'] += kadv[:3]; hooks[24 - PD + 2]['post'] += kadv[3:]
    hooks[BS]['pre'] += ([f's_waitcnt vmcnt(8)'] if loader else []) + ['s_barrier']
    hooks[BS + 1]['post'] += vadv[:3]; hooks[BS + 2]['post'] += vadv[3:]
    if loop:
        hooks[30]['post'] += [f's_sub_u32 s{sIt}, s{sIt}, 1']
        hooks[31]['post'] += [f's_cmp_lg_u32 s{sIt}, 0']
    if final:
        rd = lambda per, s: s >= 8
        period(p, 0, qk=False, sm=True, pv=True, gbase=0, reads=rd, rare=rare and rare + 'a', hooks=hooks, early=False)
        period(p, 1, qk=False, sm=False, pv=True, gbase=16, reads=rd, next_reads=False, hooks=hooks, early=False)
    else:
        period(p, 0, masked=masked, gbase=0, rare=rare and rare + 'a', hooks=hooks)
        period(p, 1, masked=masked, gbase=16, rare=rare and rare + 'b', hooks=hooks)
    if loop: p(f's_cbranch_scc1 {loop}')

def attention(p, loader, pre, tokwait=False):
    L = pre
    for r in range(64): p(f'v_accvgpr_write_b32 a{AO+r}, 0')
    for r in range(16): p(f'v_mov_b32 v{NEGM+r}, 0')
    if loader:
        if tokwait: p.waittok('K0')
        else: p('s_waitcnt vmcnt(16)')
    p('s_barrier')
    mask_init2(p, 0)
    for s in range(8): p(f'ds_read_b128 {frag(s)}, v{VK} offset:{s*1024}')
    for s in range(8): p(f'v_mfma_f32_32x32x16_bf16 {vr(S[0],16)}, {frag(s)}, {ar(AQ+4*s,4)}, {vr(S[0],16)}')
    for s in range(8): p(f'ds_read_b128 {frag(s)}, v{VK} offset:{(8+s)*1024}')
    rowmax(p, 0, T1)
    for r in range(16):
        p(f'v_sub_f32 v{S[0]+r}, v{S[0]+r}, v{T1}')
        p(f'v_sub_f32 v{NEGM+r}, 0, v{T1}')
    mask_init2(p, 1)
    for s in range(8): p(f'v_mfma_f32_32x32x16_bf16 {vr(S[1],16)}, {frag(s)}, {ar(AQ+4*s,4)}, {vr(S[1],16)}')
    for x in adv_k(): p(x)
    if loader:
        if tokwait: p.waittok('K1', 'V0')
        else: p('s_waitcnt vmcnt(8)')
    p('s_barrier')
    for s in range(PD): p(f'ds_read_b128 {frag(s)}, v{VK} offset:{s*1024}')
    sm_plain(p, 0, 0)
    p(f'v_mov_b32 v{LRUN}, v{LS}')
    p(f'v_exp_f32 v{E}, v{S[1]}')
    p(f'v_exp_f32 v{E+1}, v{S[1]+1}')
    p(f's_sub_i32 s{sIt}, s{sNTw}, 3')
    p(f's_cmp_le_i32 s{sIt}, 0')
    p(f's_cbranch_scc1 {L}_masked_setup')
    AL = os.environ.get('AL', '')
    if AL:
        p('.p2align ' + AL[0])
        if 'n' in AL: p('s_nop 0')
    p.label(f'{L}_loop')
    iteration(p, loader, rare=f'{L}_r0', loop=f'{L}_loop')
    p.label(f'{L}_masked_setup')
    p(f's_sub_i32 s{sTmp}, s{sNTw}, 3')
    p(f's_max_i32 s{sTmp}, s{sTmp}, 0')
    p(f's_sub_i32 s{sIt}, s{sNTw}, s{sTmp}')
    p(f's_sub_i32 s{sIt}, s{sIt}, 1')
    p(f's_lshl_b32 s{sTmp}, s{sTmp}, 6')
    p(f'v_cvt_f32_u32 v{T0}, s{sTmp}')
    p(f'v_mul_f32 v{T0}, 0x{f2u(BIG):08x}, v{T0}')
    p(f'v_sub_f32 v{VT}, v{VT}, v{T0}')
    p.label(f'{L}_mloop')
    iteration(p, loader, masked=True, rare=f'{L}_r1', loop=f'{L}_mloop')
    iteration(p, loader, final=True, rare=f'{L}_r2')

def epilogue(p, dual):
    p(f'v_mov_b32 v{T1}, v{LRUN}')
    p(f'v_mov_b32 v{T2}, v{LRUN}')
    p(f'v_permlane32_swap_b32 v{T1}, v{T2}')
    p(f'v_add_f32 v{T1}, v{T1}, v{T2}')
    p(f'v_rcp_f32 v{T1}, v{T1}')
    for dt in range(4):
        for ks in range(2):
            b = 48; o = 16 + 4 * (dt * 2 + ks)
            for j in range(8): p(f'v_accvgpr_read_b32 v{b+j}, a{AO+16*dt+8*ks+j}')
            for j in range(8): p(f'v_mul_f32 v{b+j}, v{b+j}, v{T1}')
            for j in range(4): p(f'v_cvt_pk_bf16_f32 v{o+j}, v{b+2*j}, v{b+2*j+1}')
    def st(fl):
        p(f's_add_u32 s{sTmp}, s{sCtxOff}, 4096')
        for f in range(8):
            so = sCtxOff if f < 4 else sTmp
            p(f'buffer_store_dwordx4 {vr(16+4*f,4)}, v{VL16}, s[{sSRDC}:{sSRDC+3}], s{so} offen offset:{(f%4)*1024}{fl}')
    dual(st)

def rare_paths(p, L):
    for nm in ('r0', 'r1'):
        rare_path(p, f'{L}_{nm}a', 0)
        rare_path(p, f'{L}_{nm}b', 1)
    rare_path(p, f'{L}_r2a', 0)
```

```python
import sys, os
sys.path.insert(0, 'gen')
import common
common.STAMPS = '-s' in sys.argv
from common import *
from attn import *
import attn
NAME = 'parallel_sum__compressed_kv_cla__swiglu_ffn__prompt_kernel'
QSCALE = 128 ** -0.5 * 1.4426950408889634
WS = 28; DBG = 32
SA, SB, SC, SD, SE, SF = 48, 52, 68, 72, 76, 80
SC1 = '' if 'nosc1' in os.environ.get('FX', '') else ' sc1'
NOINV = 'noinv' in os.environ.get('FX', '')
attn.STSC = SC1
SPIN_LIMIT = 1 << 18
CNT_S2, CNT_S3, CNT_S4 = WS_CNT, WS_CNT + 32 * 128, WS_CNT + 96 * 128
sFast = 96
LD1 = ' sc1'
PF = 'nopf' not in os.environ.get('FX', '')
FORCE = os.environ.get('FORCE', '')
FXE = os.environ.get('FX', '')
vAT, vONE, vPOLL, vZ = 124, 125, 126, 127

def st(p, idx, vt):
    stamp(p, idx, sWave, vt)

class Sync:
    def __init__(self, p): self.p = p; self.n = 0; self.tail = []
    def arrive(self, srdn, soff, t0, t1, val='1'):
        p = self.p
        p(f'v_mbcnt_lo_u32_b32 v{t0}, -1, 0'); p(f'v_mbcnt_hi_u32_b32 v{t0}, -1, v{t0}')
        p(f'v_cmp_eq_u32 vcc, 0, v{t0}'); p(f'v_mov_b32 v{t1}, 0x7fffff00')
        p(f'v_cndmask_b32 v{t0}, v{t1}, v{t0}, vcc')
        p(f'v_mov_b32 v{t1}, {val}')
        p(f'buffer_atomic_add v{t1}, v{t0}, s[{srdn}:{srdn+3}], {soff} offen sc1_ATOM', tokdef='ATOM')
    def poll_issue(self, srdn, soff, vp, vz):
        p = self.p
        p(f'v_mov_b32 v{vz}, 0')
        p(f'buffer_load_dword v{vp}, v{vz}, s[{srdn}:{srdn+3}], {soff} offen sc1')
    def poll_check(self, srdn, soff, vp, vz, target, mask=None):
        p = self.p; self.n += 1; L = f'SY{self.n}'
        p(f'v_readfirstlane_b32 s38, v{vp}')
        if mask: p(f's_and_b32 s39, s38, {mask}'); p(f's_cmp_ge_u32 s39, {target}')
        else: p(f's_cmp_ge_u32 s38, {target}')
        p(f's_cbranch_scc1 {L}_ok')
        self.spin(srdn, soff, vp, vz, target, mask)
        p.label(f'{L}_ok')
    def spin(self, srdn, soff, vp, vz, target, mask=None):
        p = self.p; self.n += 1; L = f'SP{self.n}'
        p('s_mov_b32 s95, 0'); p(f'v_mov_b32 v{vz}, 0')
        p.label(L)
        p(f'buffer_load_dword v{vp}, v{vz}, s[{srdn}:{srdn+3}], {soff} offen sc1')
        p(f'v_readfirstlane_b32 s38, v{vp}')
        if mask: p(f's_and_b32 s39, s38, {mask}'); p(f's_cmp_ge_u32 s39, {target}')
        else: p(f's_cmp_ge_u32 s38, {target}')
        p(f's_cbranch_scc1 {L}_d')
        p('s_add_u32 s95, s95, 1'); p(f's_cmp_lt_u32 s95, {SPIN_LIMIT}'); p(f's_cbranch_scc1 {L}')
        p.label(f'{L}_d')

def build():
    p = Prog(); sy = Sync(p)
    lab = [0]
    def only(cond, fn):
        lab[0] += 1; L = f'ON{lab[0]}'
        if cond == 'w0': p(f's_cmp_lg_u32 s{sWave}, 0')
        else: p(f's_cmp_ge_u32 s{sWave}, 4')
        p(f's_cbranch_scc1 {L}'); fn(); p.label(L)
    vL, vL16 = 1, 2
    vW, vWD = 4, 8
    t0, t1, t2, t3 = 18, 19, 20, 21
    WF, ACC = 32, 64
    sWoff, sCoff, sCl, sOut, sT = 65, 67, 57, 56, 39
    sT = 47
    p('s_cmp_ge_u32 s2, 256'); p('s_cbranch_scc1 K_end')
    p('s_load_dwordx16 s[4:19], s[0:1], 0'); p('s_load_dwordx8 s[20:27], s[0:1], 64'); p('s_load_dwordx2 s[92:93], s[0:1], 96')
    stamp_init(p)
    p(f'v_lshrrev_b32 v{t0}, 6, v0'); p(f'v_readfirstlane_b32 s{sWave}, v{t0}')
    p(f'v_and_b32 v{vL}, 63, v0'); p(f'v_lshlrev_b32 v{vL16}, 4, v{vL}')
    p('s_and_b32 s38, s2, 7'); p('s_lshl_b32 s38, s38, 2'); p('s_lshr_b32 s39, s2, 3'); p('s_and_b32 s39, s39, 3')
    p(f's_add_u32 s{sH}, s38, s39'); p(f's_lshr_b32 s{sI}, s2, 5')
    wtr_addr_setup(p, vW, vL, t0, t1, False)
    wdma_addr_setup(p, vWD, vL, t0, t1, 8192)
    vCD, vCR, vW1 = 10, 12, 14
    p(f'v_bfe_u32 v{t0}, v{vL}, 4, 2'); p(f'v_and_b32 v{t1}, 3, v{vL}'); p(f'v_xor_b32 v{t0}, v{t0}, v{t1}'); p(f'v_lshlrev_b32 v{t0}, 4, v{t0}')
    p(f'v_lshrrev_b32 v{t1}, 2, v{vL}'); p(f'v_lshl_add_u32 v{vCD}, v{t1}, 10, v{t0}'); p(f'v_add_u32 v{vCD+1}, {16*1024-1024}, v{vCD}')
    SLOT1 = lambda g: ((g + 4) % 5) * 32768
    p(f's_lshl_b32 s{sCl}, s{sWave}, 11')
    p(f'v_and_b32 v{t0}, 31, v{vL}'); p(f'v_bfe_u32 v{t1}, v{vL}, 2, 2'); p(f'v_lshrrev_b32 v{t2}, 5, v{vL}')
    p(f's_add_u32 s38, s{sCl}, {SLOT1(0)}')
    for q in range(2):
        p(f'v_add_u32 v{t3}, {2*q}, v{t2}'); p(f'v_xor_b32 v{t3}, v{t3}, v{t1}'); p(f'v_lshlrev_b32 v{t3}, 4, v{t3}')
        p(f'v_lshl_add_u32 v{t3}, v{t0}, 6, v{t3}'); p(f'v_add_u32 v{vCR+q}, s38, v{t3}')
    for n in range(4): p(f'v_add_u32 v{vW1+n}, {SLOT1(0) + 16384}, v{vW+n}')
    p('s_waitcnt lgkmcnt(0)')
    srd(p, WS, 92, 0, WS_SIZE); srd(p, DBG, 26, 0, 256)
    if common.STAMPS: srd(p, 84, 92, WS_TS, 1 << 20)
    SX, SCK, SUK, SUV, SG, SU = SA, SB, SC, SD, SE, SF
    srd(p, SX, 4, 0, 2048*512*2); srd(p, SCK, 6, 0, 2048*512*2); srd(p, SUK, 10, 0, 512*4096*2); srd(p, SUV, 12, 0, 512*4096*2)
    srd(p, SG, 18, 0, 512*1376*2); srd(p, SU, 20, 0, 512*1376*2)
    if 'PF0' in FXE:
        p(f'v_lshlrev_b32 v26, 7, v{vL}')
        p(f's_cmp_eq_u32 s{sWave}, 0'); p('s_cbranch_scc0 PZ1'); p('s_lshl_b32 s38, s2, 13'); p(f'buffer_load_dword v3, v26, s[{SCK}:{SCK+3}], s38 offen'); p.label('PZ1')
        p(f's_lshl_b32 s38, s2, 14'); p(f's_and_b32 s39, s{sWave}, 1'); p('s_lshl_b32 s39, s39, 13'); p('s_add_u32 s38, s38, s39'); p(f's_lshr_b32 s39, s{sWave}, 1')
        p('s_cmp_eq_u32 s39, 1'); p('s_cbranch_scc0 PZ2'); p(f'buffer_load_dword v3, v26, s[{SUK}:{SUK+3}], s38 offen'); p.label('PZ2')
        p('s_cmp_eq_u32 s39, 2'); p('s_cbranch_scc0 PZ3'); p(f'buffer_load_dword v3, v26, s[{SUV}:{SUV+3}], s38 offen'); p.label('PZ3')
    p(f's_lshl_b32 s38, s{sH}, 8'); p(f's_lshl_b32 s39, s{sWave}, 16'); p(f's_add_u32 s{sWoff}, s38, s39')
    p(f's_lshl_b32 s38, s{sI}, 18'); p(f's_lshl_b32 s39, s{sWave}, 15'); p(f's_add_u32 s{sCoff}, s38, s39')
    p(f's_lshl_b32 s{sT}, s{sWave}, 11')
    sW1 = 99
    p(f's_lshl_b32 s38, s{sH}, 8'); p(f's_lshl_b32 s39, s{sWave}, 15'); p(f's_add_u32 s{sW1}, s38, s39')
    SWQ = SA
    def itemsW(g):
        srdn = SUK if g < 8 else (SUV if g < 16 else SWQ)
        return [([f's_add_u32 m0, s{sT}, {(g % 4) * 16384}', f's_add_u32 s38, s{sWoff}, {(g % 8) * 64 * 8192}'],
                 f'buffer_load_dwordx4 v{vWD+tt}, s[{srdn}:{srdn+3}], s38 offen offset:{tt*1024} lds', f'W{g}') for tt in range(2)]
    def items1(g):
        b = SLOT1(g)
        it = [([f's_add_u32 m0, s{sCl}, {b}', f's_add_u32 s38, s{sCoff}, {g * 64}'],
               f'buffer_load_dwordx4 v{vCD+t}, s[{SCK}:{SCK+3}], s38 offen offset:{t*1024} lds', f'H{g}') for t in range(2)]
        for part, srdn in ((0, SUK), (1, SUV)):
            it.append(([f's_lshr_b32 s39, s{sCl}, 1', f's_add_u32 m0, s39, {b + 16384 + part * 8192}', f's_add_u32 s38, s{sW1}, {g * 32 * 8192}'],
                       f'buffer_load_dwordx4 v{vWD}, s[{srdn}:{srdn+3}], s38 offen lds', f'H{g}'))
        return it
    def emit_items(items):
        for pre, ins, tok in items:
            for x in pre: p(x)
            p(ins, tokdef=tok)
    def dmaW(g): emit_items(itemsW(g))
    sXv = 97
    p(f's_getreg_b32 s{sXv}, hwreg(HW_REG_XCC_ID, 0, 4)')
    p('v_mov_b32 v22, 0'); p('v_mov_b32 v23, 0')
    X = 64
    p(f's_lshl_b32 s40, s2, 3'); p(f's_add_u32 s40, s40, s{sWave}'); p(f's_lshl_b32 s41, s40, 10')
    p(f'buffer_load_dwordx4 {vr(X,4)}, v{vL16}, s[{SX}:{SX+3}], s41 offen')
    G = 96
    p('s_lshr_b32 s42, s2, 3'); p('s_and_b32 s43, s2, 7'); p('s_lshl_b32 s43, s43, 6')
    p('s_mul_i32 s44, s42, 3'); p('s_lshl_b32 s45, s42, 1'); p('s_add_u32 s45, s45, 22'); p('s_cmp_lt_u32 s42, 22'); p('s_cselect_b32 s44, s44, s45')
    p('s_lshl_b32 s45, s42, 9'); p('s_add_u32 s45, s45, s43'); p('s_mul_i32 s45, s45, 192'); p(f's_add_u32 s45, s45, {WS_GU}')
    p('s_mov_b32 s46, 43691')
    for j in range(2):
        b = G + 16 * j
        p(f's_lshl_b32 s38, s{sWave}, 6'); p(f's_add_u32 s38, s38, {512*j}'); p(f'v_add_u32 v{b}, s38, v{vL}')
        p(f'v_mul_lo_u32 v{b+1}, v{b}, s46'); p(f'v_lshrrev_b32 v{b+1}, 19, v{b+1}')
        p(f'v_mul_u32_u24 v{b+2}, 12, v{b+1}'); p(f'v_sub_u32 v{b+2}, v{b}, v{b+2}')
        p(f'v_add_u32 v{b+1}, s43, v{b+1}'); p(f'v_mul_u32_u24 v{b+1}, 2752, v{b+1}')
        p(f'v_lshrrev_b32 v{b+3}, 2, v{b+2}'); p(f'v_add_u32 v{b+3}, s44, v{b+3}'); p(f'v_lshlrev_b32 v{b+3}, 5, v{b+3}')
        p(f'v_and_b32 v{b+4}, 1, v{b+2}'); p(f'v_lshlrev_b32 v{b+4}, 4, v{b+4}')
        p(f'v_add3_u32 v{b+1}, v{b+1}, v{b+3}, v{b+4}')
        p(f'v_mov_b32 v{b+5}, 0x7fffff00')
        p(f'v_cmp_gt_u32 vcc, 768, v{b}'); p(f'v_cndmask_b32 v{b+1}, v{b+5}, v{b+1}, vcc')
        p(f'v_lshlrev_b32 v{b}, 4, v{b}'); p(f'v_cndmask_b32 v{b}, v{b+5}, v{b}, vcc')
        p(f'v_and_b32 v{b+2}, 2, v{b+2}'); p(f'v_cmp_eq_u32 vcc, 0, v{b+2}')
        p(f'v_cndmask_b32 v{b+3}, v{b+5}, v{b+1}, vcc'); p(f'v_cndmask_b32 v{b+4}, v{b+1}, v{b+5}, vcc')
        p(f'buffer_load_dwordx4 {vr(b+8,4)}, v{b+3}, s[{SG}:{SG+3}], 0 offen')
        p(f'buffer_load_dwordx4 {vr(b+12,4)}, v{b+4}, s[{SU}:{SU+3}], 0 offen')
    emit_items(items1(0))
    early = items1(1)
    def wave_sum_i(v, t):
        nonlocal early
        for m in (0x041F, 0x081F, 0x101F, 0x201F, 0x401F):
            p(f'ds_swizzle_b32 v{t}, v{v} offset:0x{m:04X}')
            if early: emit_items([early.pop(0)])
            p(f'v_add_f32 v{v}, v{v}, v{t}')
        p(f'v_mov_b32 v{t}, v{v}')
        if early: emit_items([early.pop(0)])
        p(f'v_permlane32_swap_b32 v{v}, v{t}')
        p(f'v_add_f32 v{v}, v{v}, v{t}')
    F = 72
    for j in range(4):
        p(f'v_lshlrev_b32 v{F+2*j}, 16, v{X+j}'); p(f'v_and_b32 v{F+2*j+1}, 0xffff0000, v{X+j}')
    p(f'v_add_f32 v{t0}, v{F}, v{F+1}')
    for j in range(2, 8): p(f'v_add_f32 v{t0}, v{t0}, v{F+j}')
    wave_sum_i(t0, t1)
    p(f'v_mul_f32 v{t0}, 0x{f2u(1/512):08x}, v{t0}')
    for j in range(8): p(f'v_sub_f32 v{F+j}, v{F+j}, v{t0}')
    p(f'v_mul_f32 v{t2}, v{F}, v{F}')
    for j in range(1, 8): p(f'v_fmac_f32 v{t2}, v{F+j}, v{F+j}')
    emit_items(early)
    early = items1(2)
    wave_sum_i(t2, t1)
    emit_items(early)
    p(f'v_mov_b32 v{t3}, 0x{f2u(1e-5):08x}')
    p(f'v_fmac_f32 v{t3}, 0x{f2u(1/512):08x}, v{t2}')
    p(f'v_rsq_f32 v{t3}, v{t3}')
    for j in range(8): p(f'v_mul_f32 v{F+j}, v{F+j}, v{t3}')
    for j in range(4): p(f'v_cvt_pk_bf16_f32 v{X+j}, v{F+2*j}, v{F+2*j+1}')
    p(f'v_lshlrev_b32 v{t0}, 7, v{vL}'); p(f's_lshl_b32 s38, s{sWave}, 4'); p('s_add_u32 s38, s38, 98304'); p(f'v_add_u32 v{t0}, s38, v{t0}')
    p(f'ds_write_b128 v{t0}, {vr(X,4)}')
    for j in range(2):
        b = G + 16 * j
        for q in range(4): p(f'v_or_b32 v{b+8+q}, v{b+8+q}, v{b+12+q}')
        p(f'buffer_store_dwordx4 {vr(b+8,4)}, v{b}, s[{WS}:{WS+3}], s45 offen{SC1}')
    p(f'v_mov_b32 v{t1}, 0x7fffff00'); p(f's_lshl_b32 s40, s2, 7'); p(f's_add_u32 s40, s40, {WS_CNT}'); p(f'v_mov_b32 v{t2}, s40')
    p('s_cmp_lt_u32 s2, 128'); p('s_cselect_b32 s41, 1, 0'); p(f'v_cmp_gt_u32 vcc, s41, v0'); p(f'v_cndmask_b32 v{t2}, v{t1}, v{t2}, vcc')
    p(f'v_mov_b32 v{t3}, 0'); p(f'buffer_store_dword v{t3}, v{t2}, s[{WS}:{WS+3}], 0 offen{SC1}')
    srd(p, SWQ, 8, 0, 512*4096*2)
    p(f'v_lshlrev_b32 v26, 7, v{vL}')
    p(f'v_lshrrev_b32 v27, 3, v{vL}'); p('v_lshlrev_b32 v27, 13, v27'); p(f'v_and_b32 v3, 7, v{vL}'); p('v_lshlrev_b32 v3, 7, v3'); p('v_add_u32 v27, v27, v3')
    def itemsPFc():
        return [(['s_lshr_b32 s38, s2, 3', 's_lshl_b32 s38, s38, 16', f's_lshl_b32 s39, s{sWave}, 13', 's_add_u32 s38, s38, s39'],
                 f'buffer_load_dword v3, v26, s[{SCK}:{SCK+3}], s38 offen', None)]
    def itemsPFx():
        return [([f's_lshl_b32 s38, s{sR32}, 15', f's_and_b32 s39, s{sH}, 3', 's_lshl_b32 s39, s39, 13', 's_add_u32 s38, s38, s39', f's_add_u32 s38, s38, {WS_XN}'],
                 f'buffer_load_dword v3, v26, s[{WS}:{WS+3}], s38 offen sc1', None)]
    def itemsPFw(srdn, grp):
        lo = 0 if grp == 'A' else 4
        return [(['s_lshr_b32 s38, s2, 3', 's_lshl_b32 s38, s38, 4', f's_and_b32 s39, s{sWave}, 1', 's_lshl_b32 s39, s39, 3', 's_add_u32 s38, s38, s39', 's_lshl_b32 s38, s38, 13',
                  's_and_b32 s39, s2, 7', 's_lshl_b32 s39, s39, 10', 's_add_u32 s38, s38, s39',
                  f's_and_b32 s39, s{sWave}, 2', 's_cmp_eq_u32 s39, 0', f's_cselect_b32 s38, s38, s{sOOB}'],
                 f'buffer_load_dword v3, v27, s[{srdn}:{srdn+3}], s38 offen', None)]
    p(f's_mov_b32 s{sOOB}, 0x80000000')
    st(p, 0, t0)
    sG0, sGoff, sGl, sHoff = 40, 41, 42, 43
    p('s_sub_u32 s44, 15, s%d' % sI); p(f's_cmp_lt_u32 s{sWave}, 4'); p(f's_cselect_b32 s45, s{sI}, s44')
    p(f's_and_b32 s46, s{sWave}, 3'); p('s_lshl_b32 s38, s45, 2'); p(f's_add_u32 s{sR32}, s38, s46')
    p('s_lshl_b32 s38, s45, 1'); p(f's_add_u32 s{sNTw}, s38, 2')
    p('s_lshl_b32 s38, s44, 1'); p(f's_add_u32 s{sNT}, s38, 2')
    p(f's_mul_i32 s38, s{sH}, {512*192}'); p(f's_mul_i32 s39, s{sWave}, 3072'); p(f's_add_u32 s{sGoff}, s38, s39'); p(f's_add_u32 s{sGoff}, s{sGoff}, {WS_GU}'); p(f's_add_u32 s{sGl}, s39, 65536')
    p(f's_mul_i32 s38, s{sH}, 3'); p(f's_lshl_b32 s39, s{sH}, 1'); p('s_add_u32 s39, s39, 22'); p(f's_cmp_lt_u32 s{sH}, 22'); p(f's_cselect_b32 s{sG0}, s38, s39')
    p(f's_mul_i32 s38, s{sR32}, {NKS}'); p(f's_lshl_b32 s39, s{sH}, 3'); p('s_add_u32 s39, s38, s39'); p(f's_lshl_b32 s{sCtxOff}, s39, 10'); p(f's_add_u32 s{sCtxOff}, s{sCtxOff}, {WS_AF}')
    p(f's_add_u32 s38, s38, s{sG0}'); p('s_add_u32 s38, s38, 256'); p(f's_lshl_b32 s{sHoff}, s38, 10'); p(f's_add_u32 s{sHoff}, s{sHoff}, {WS_AF}')
    p(f's_lshl_b32 s38, s{sH}, 19'); p('s_lshl_b32 s39, s46, 12'); p('s_add_u32 s38, s38, s39')
    p(f's_add_u32 s{sKbase}, s38, {WS_KF}'); p(f's_add_u32 s{sVbase}, s38, {WS_VF}')
    p(f's_mov_b32 s{sKdl}, s39'); p(f's_add_u32 s{sVdl}, s39, {LDS_V}') if False else None
    p(f's_mov_b32 s44, s39')
    p(f's_lshl_b32 s38, s{sH}, 6'); p(f's_lshl_b32 s39, s{sI}, 3'); p('s_add_u32 s38, s38, s39'); p(f's_add_u32 s38, s38, s{sWave}')
    p(f's_lshl_b32 s{sOut}, s38, 13')
    def itemsG(c):
        return [([f's_add_u32 m0, s{sGl}, {c * 24576}', f's_add_u32 s38, s{sGoff}, {c * 24576}'],
                 f'buffer_load_dwordx4 v{vL16}, s[{WS}:{WS+3}], s38 offen offset:{j*1024} sc1 lds', f'G{c}') for j in range(3)]
    def itemsX(c):
        return [([f's_lshl_b32 s38, s{sR32}, 15', f's_add_u32 s38, s38, {WS_XN + c*4096}'],
                 f'buffer_load_dwordx4 {ar(4*(4*c+s),4)}, v{vL16}, s[{WS}:{WS+3}], s38 offen offset:{s*1024} sc1', f'XL{c}') for s in range(4)]
    PDW = 4
    NM = 24 * 16
    def wread(m):
        g, r = divmod(m, 16); s, n = divmod(r, 4)
        b = WF + 4 * (m % 8); off = (g % 4) * 16384 + s * 4096
        p(f'ds_read_b64_tr_b16 {vr(b,2)}, v{vW+n} offset:{off}')
        p(f'ds_read_b64_tr_b16 {vr(b+2,2)}, v{vW+n} offset:{off+1024}')
    def cread(c):
        for s in range(4): p(f'ds_read_b128 {ar(4*(4*c+s),4)}, v{vCR+s} offset:{(c % 3) * 4096}')
    def epi(part):
        for n in range(4):
            a = ACC + 16 * n
            for j in range(8): p(f'v_cvt_pk_bf16_f32 v{a+j}, v{a+2*j}, v{a+2*j+1}')
        def stores(fl):
            base = WS_KF if part == 0 else WS_VF
            for hi in range(2):
                p(f's_add_u32 s38, s{sOut}, {base + hi * 4096}')
                for q in range(4):
                    o = hi * 4 + q
                    if part == 0: n, half = o // 2, o % 2
                    else: half, n = o // 4, o % 4
                    p(f'buffer_store_dwordx4 {vr(ACC+16*n+4*half,4)}, v{vL16}, s[{WS}:{WS+3}], s38 offen offset:{q*1024}{fl}')
        dual(stores)
    vP, vPz = 22, 23
    def s1_arrive():
        p(f'v_mbcnt_lo_u32_b32 v{t0}, -1, 0'); p(f'v_mbcnt_hi_u32_b32 v{t0}, -1, v{t0}')
        p(f'v_cmp_eq_u32 vcc, 0, v{t0}'); p(f'v_mov_b32 v{t1}, 0x7fffff00'); p(f'v_cndmask_b32 v{t0}, v{t1}, v{t0}, vcc')
        p(f's_or_b32 s38, s{sXv}, 0x80'); p(f'v_mov_b32 v{t1}, s38')
        p(f'buffer_store_byte v{t1}, v{t0}, s[{DBG}:{DBG+3}], s2 offen sc1')
    def s1_issue():
        p(f'v_lshlrev_b32 v{vPz}, 2, v{vL}')
        p(f'buffer_load_dword v{vP}, v{vPz}, s[{DBG}:{DBG+3}], 0 offen sc1')
    def s1_test(L):
        p(f'v_and_b32 v{t0}, 0x80808080, v{vP}'); p(f'v_mov_b32 v{t1}, 0x80808080')
        p(f'v_cmp_ne_u32 vcc, v{t0}, v{t1}')
        p(f's_cmp_eq_u64 vcc, 0')
    def s1_check():
        lab[0] += 1; L = f'S1c{lab[0]}'
        s1_test(L); p(f's_cbranch_scc1 {L}_ok')
        p('s_mov_b32 s95, 0')
        p.label(f'{L}_sp')
        s1_issue(); s1_test(L); p(f's_cbranch_scc1 {L}_ok')
        p('s_add_u32 s95, s95, 1'); p(f's_cmp_lt_u32 s95, {SPIN_LIMIT}'); p(f's_cbranch_scc1 {L}_sp')
        p.label(f'{L}_ok')
        p('s_and_b32 s38, s2, 3'); p('s_lshl_b32 s38, s38, 3')
        p(f'v_lshrrev_b32 v{t0}, s38, v{vP}'); p(f'v_and_b32 v{t0}, 0x7f, v{t0}')
        p('s_bfe_u32 s39, s2, 0x10002')
        p(f'v_and_b32 v{t1}, 1, v{vL}'); p(f'v_cmp_eq_u32 s[94:95], s39, v{t1}')
        p(f'v_cmp_ne_u32 vcc, s{sXv}, v{t0}')
        p('s_and_b64 vcc, vcc, s[94:95]')
        p('s_cmp_eq_u64 vcc, 0'); p(f's_cselect_b32 s{sFast}, 1, 0')
        if FORCE: p(f's_mov_b32 s{sFast}, {1 if FORCE == "fast" else 0}')
    def dual(fn, kind='kv'):
        if ('slow' + kind) in FXE:
            fn(' sc1'); return
        lab[0] += 1; L = f'DU{lab[0]}'
        p(f's_cmp_eq_u32 s{sFast}, 0'); p(f's_cbranch_scc1 {L}s'); fn(''); p(f's_branch {L}j'); p.label(f'{L}s'); fn(' sc1'); p.label(f'{L}j')
    def itemsKV(which, t, tok):
        if which == 'K': pre = [f's_add_u32 m0, s44, {t*KSLOT}', f's_add_u32 s38, s{sKbase}, {t*16384}']
        else: pre = [f's_add_u32 m0, s44, {LDS_V + t*VSLOT}', f's_add_u32 s38, s{sVbase}, {t*16384}']
        return [(pre, f'buffer_load_dwordx4 v{vL16}, s[{WS}:{WS+3}], s38 offen offset:{j*1024} sc1 lds', tok) for j in range(4)]
    class VQ:
        def __init__(self, grp):
            self.q = []; self.par = 0 if grp == 'A' else 1; self.now = 0
            self.delay = int(os.environ.get('DLY', 6)) if grp == 'B' else 0
        def add(self, items, front=False, nodelay=False):
            items = [(it, self.now + (0 if nodelay else self.delay)) for it in items]
            if front: self.q = items + self.q
            else: self.q += items
        def slot(self, n):
            self.now += 1
            if n % 2 == self.par:
                for k, (it, t) in enumerate(self.q):
                    if t <= self.now:
                        emit_items([it]); self.q.pop(k); break
        def flush(self):
            emit_items([it for it, t in self.q]); self.q = []
    sCn = 45
    p(f's_lshl_b32 s{sCn}, s{sH}, 7'); p(f's_add_u32 s{sCn}, s{sCn}, {CNT_S2}')
    sS, sRB, sCT, sQ0, sWo = 48, 49, 50, 51, 52
    SO, SDn = SC, SD
    SLOT3 = [114688, 131072, 147456, 98304]
    v3W, v3D = 4, 8
    def itemsW3(g, wv, tok=True):
        pre = [f's_add_u32 m0, s{wv}, {SLOT3[g % 4]}', f's_lshl_b32 s39, s{wv}, 2', f's_add_u32 s39, s39, s{sWo}']
        if g < 8: pre += [f's_lshl_b32 s38, s{sS}, 19', f's_add_u32 s38, s38, {g << 16}']; srdn = SO
        else: pre += [f's_lshl_b32 s38, s{sQ0}, 14', f's_add_u32 s38, s38, {(g - 8) << 16}']; srdn = SDn
        pre += ['s_add_u32 s38, s38, s39']
        return [(pre, f'buffer_load_dwordx4 v{v3D+tt}, s[{srdn}:{srdn+3}], s38 offen offset:{tt*1024} lds', f'X{g}' if tok else None) for tt in range(2)]
    def dmaW3(g, wv, tok=True): emit_items(itemsW3(g, wv, tok))
    def phase12(grp):
        vq = VQ(grp)
        def w0(fn):
            if grp == 'A': only('w0', fn)
        p('s_waitcnt lgkmcnt(0)')
        p.waittok('H0'); p('s_barrier')
        p(f's_lshl_b32 s38, s{sWave}, 10'); p('s_add_u32 s38, s38, 98304'); p(f'v_add_u32 v{t0}, s38, v{vL16}')
        p(f'ds_read_b128 v[28:31], v{t0}')
        p(f'v_lshrrev_b32 v{t0}, 3, v{vL}'); p(f'v_lshlrev_b32 v{t0}, 9, v{t0}'); p(f'v_and_b32 v{t1}, 7, v{vL}'); p(f'v_lshl_add_u32 v{t0}, v{t1}, 4, v{t0}')
        p('s_lshr_b32 s38, s2, 2'); p('s_lshl_b32 s38, s38, 15'); p('s_and_b32 s39, s2, 3'); p('s_lshl_b32 s39, s39, 7'); p('s_add_u32 s38, s38, s39')
        p(f's_lshl_b32 s39, s{sWave}, 12'); p('s_add_u32 s38, s38, s39'); p(f's_add_u32 s38, s38, {WS_XN}')
        p(f'buffer_store_dwordx4 v[28:31], v{t0}, s[{WS}:{WS+3}], s38 offen{SC1}', tokdef='LNST')
        st(p, 13, t0)
        vq.add(items1(3))
        if PF and 'PFc' in FXE: vq.add(itemsPFc())
        CF, WF1 = 32, 48
        def cread1(g):
            for q in range(2): p(f'ds_read_b128 {vr(CF + 8*(g%2) + 4*q, 4)}, v{vCR+q}')
        def wread1(m):
            g, r = divmod(m, 16); q, part, n = r >> 3, (r >> 2) & 1, r & 3
            b = WF1 + 4 * (m % 8); off = part * 8192 + q * 4096
            if 'x1nords' in FXE and m >= 16: return
            p(f'ds_read_b64_tr_b16 {vr(b,2)}, v{vW1+n} offset:{off}')
            p(f'ds_read_b64_tr_b16 {vr(b+2,2)}, v{vW1+n} offset:{off+1024}')
        cread1(0)
        for m in range(PDW): wread1(m)
        vG = 24
        p(f'v_lshrrev_b32 v{t0}, 5, v{vL}'); p(f'v_lshlrev_b32 v{t0}, 3, v{t0}'); p(f'v_bfe_u32 v{t1}, v{vL}, 2, 2'); p(f'v_add_u32 v{t0}, v{t0}, v{t1}')
        p(f'v_mul_u32_u24 v{t0}, 192, v{t0}')
        p(f'v_bfe_u32 v{t1}, v{vL}, 4, 1'); p(f'v_lshlrev_b32 v{t1}, 5, v{t1}'); p(f'v_add_u32 v{t0}, v{t0}, v{t1}')
        p(f'v_and_b32 v{t1}, 3, v{vL}'); p(f'v_lshlrev_b32 v{t1}, 3, v{t1}'); p(f'v_add_u32 v{t0}, v{t0}, v{t1}')
        p(f'v_add_u32 v{vG}, 65536, v{t0}'); p(f'v_add_u32 v{vG+1}, {65536+49152}, v{t0}')
        def vadd(reg, d):
            p(f'v_add_u32 v{reg}, 0x{d & 0xffffffff:x}, v{reg}')
        for g in range(16):
            for r in range(16):
                m = g * 16 + r; q, part, n = r >> 3, (r >> 2) & 1, r & 3
                a = ar(64 * part + 16 * n, 16); wf = vr(WF1 + 4 * (m % 8), 4); cf = vr(CF + 8 * (g % 2) + 4 * q, 4)
                cin = a if not (g == 0 and q == 0) else '0'
                if part == 1: p(f'v_mfma_f32_32x32x16_bf16 {a}, {cf}, {wf}, {cin}')
                else: p(f'v_mfma_f32_32x32x16_bf16 {a}, {wf}, {cf}, {cin}')
                if r == 11 and g < 15:
                    toks = [f'H{g+1}'] + (['LNST'] if g == 3 else [])
                    if 'x1novm' in FXE: toks = ['LNST'] if g == 3 else []
                    if toks: p.waittok(*toks)
                    if 'x1nobar' not in FXE or g == 3: p('s_barrier')
                    d = SLOT1(g + 1) - SLOT1(g)
                    for q2 in range(2): vadd(vCR + q2, d)
                    cread1(g + 1)
                    if g == 3: w0(s1_arrive)
                if m + PDW < 256 and not (r >= 12 and False):
                    if r == 12 and g < 15:
                        for n2 in range(4): vadd(vW1 + n2, SLOT1(g + 1) - SLOT1(g))
                    wread1(m + PDW)
                if r == 12:
                    if g + 4 < 16 and 'x1novm' not in FXE: vq.add(items1(g + 4))
                    if g == 12: vq.add(itemsW(16) + itemsW(17))
                    if g == 13: vq.add(itemsW(18))
                    if PF and g == 6 and grp == 'B' and 'noPFq' not in FXE: vq.add(itemsPFw(SWQ, grp))
                    if PF and g == 0 and 'noPFuk' not in FXE: vq.add(itemsPFw(SUK if grp == 'A' else SUV, grp))
                    if g == 8: s1_issue()
                    if g == 9: s1_check()
                    if PF and g == 10 and 'noPFx' not in FXE: vq.add(itemsPFx())
                vq.slot(m)
            if 'chst' in os.environ.get('FX', ''): st(p, 16 + g, t0)
        vq.flush()
        def epi_half(t, half, T, P_):
            part, n = divmod(t, 4)
            ops = [f'v_accvgpr_read_b32 v{T+j2}, a{16*t+8*half+j2}' for j2 in range(8)]
            ops += [f'v_cvt_pk_bf16_f32 v{P_+j2}, v{T+2*j2}, v{T+2*j2+1}' for j2 in range(4)]
            def stores(fl):
                o = ((2*n + half) if part == 0 else (half * 4 + n)) * 1024
                p(f's_add_u32 s38, s{sOut}, {(WS_KF if part == 0 else WS_VF) + (o & ~4095)}')
                p(f'buffer_store_dwordx4 {vr(P_,4)}, v{vL16}, s[{WS}:{WS+3}], s38 offen offset:{o & 4095}{fl}', tokdef='KVST')
            return ops, stores
        for t in range(3):
            for half in range(2):
                ops, stores = epi_half(t, half, 80 + 8 * ((2*t+half) % 4), 112 + 4 * ((2*t+half) % 4))
                for x in ops: p(x)
                dual(stores)
            emit_items(itemsX(t))
        fill = []
        for t in range(3, 8):
            for half in range(2):
                ops, stores = epi_half(t, half, 10, 28)
                fill += ops + [('st', stores)]
            fill += [('x', t)]
        def filler(k):
            for _ in range(k):
                if not fill: return
                f = fill.pop(0)
                if isinstance(f, tuple):
                    if f[0] == 'st': dual(f[1])
                    else: vq.add(itemsX(f[1]), nodelay=True)
                else: p(f)
        st(p, 2, t0); stamp_real(p, 43, sWave, t0)
        p.waittok('W16'); p('s_barrier')
        for m in range(256, 256 + PDW): wread(m)
        for g in range(16, 24):
            c = g - 16
            assert not any(it[2] == f'XL{c}' for it, t in vq.q), ('XL', c)
            for r in range(16):
                m = g * 16 + r; s, n = divmod(r, 4)
                a = vr(ACC + 16 * n, 16); wf = vr(WF + 4 * (m % 8), 4); cf = ar(4 * (4 * c + s), 4)
                cin = a if not (c == 0 and s == 0) else '0'
                p(f'v_mfma_f32_32x32x16_bf16 {a}, {wf}, {cf}, {cin}')
                if r == 16 - PDW - 1:
                    toks = [f'W{g+1}'] if g < 23 else ['G0', 'G1', 'G2', 'G3']
                    if g == 21:
                        assert not fill
                        toks.append('KVST')
                    p.waittok(*toks); p('s_barrier')
                    if g == 21: w0(lambda: sy.arrive(WS, f's{sCn}', t0, t1))
                if m + PDW < NM: wread(m + PDW)
                if r == 16 - PDW:
                    if g + 3 < 24: vq.add(itemsW(g + 3), front=True)
                    if g == 23: w0(lambda: sy.poll_issue(WS, f's{sCn}', vP, vPz))
                    if g in (19, 20): vq.add(itemsG(g - 19))
                    if g == 21: vq.add(itemsG(2) + itemsG(3))
                filler(2)
                vq.slot(m)
            if 'chst' in os.environ.get('FX', ''): st(p, 16 + g, t0)
        QP = [104, 108, 120, 124, 96, 100, 112, 116]
        for n in (2, 3, 0, 1):
            a = ACC + 16 * n
            for j in range(16): p(f'v_mul_f32 v{a+j}, 0x{f2u(QSCALE):08x}, v{a+j}')
            for j in range(8): p(f'v_cvt_pk_bf16_f32 v{QP[2*n] + j}, v{a+2*j}, v{a+2*j+1}')
        st(p, 3, t0)
        GA = [64, 80, 0]
        GA[2] = 4
        def gread(m, nt):
            per = 8 * nt; c, r = divmod(m, per); s, t = divmod(r, nt)
            b = WF + 4 * (m % 8); off = (c % 2) * 24576 + s * 3072 + t * 64; a = vG + c // 2
            p(f'ds_read_b64_tr_b16 {vr(b,2)}, v{a} offset:{off}')
            p(f'ds_read_b64_tr_b16 {vr(b+2,2)}, v{a} offset:{off+768}')
        def gu(nt):
            per = 8 * nt; tot = 4 * per
            vq.q = list(pend)
            for m in range(PDW): gread(m, nt)
            for m in range(tot):
                c, r = divmod(m, per); s, t = divmod(r, nt)
                a = vr(GA[t], 16); wf = vr(WF + 4 * (m % 8), 4); xf = ar(4 * (8 * c + s), 4)
                cin = a if not (c == 0 and s == 0) else '0'
                p(f'v_mfma_f32_32x32x16_bf16 {a}, {wf}, {xf}, {cin}')
                if m == 6: w0(lambda: sy.poll_check(WS, f's{sCn}', vP, vPz, 8))
                if r == per - PDW - 1 and c < 2: p('s_barrier')
                if m + PDW < tot: gread(m + PDW, nt)
                if r == per - PDW and c == 0 and grp == 'A': vq.add(itemsKV('K', 0, 'K0') + itemsKV('K', 1, 'K1') + itemsKV('V', 0, 'V0') + itemsKV('K', 2, 'K2'))
                if r == per - PDW and c == 1 and grp == 'A': vq.add(itemsKV('V', 1, 'V1'))
                vq.slot(m)
            vq.flush()
            for t in range(nt):
                a = GA[t]
                for j in range(8):
                    T = WF + 4 * (j % 4)
                    p(f'v_mul_f32 v{T}, 0x{f2u(-1.4426950408889634):08x}, v{a+j}')
                    p(f'v_exp_f32 v{T}, v{T}')
                    p(f'v_mul_f32 v{T+1}, v{a+j}, v{a+8+j}')
                    p(f'v_add_f32 v{T}, 1.0, v{T}')
                    p(f'v_rcp_f32 v{T}, v{T}')
                    p(f'v_mul_f32 v{a+j}, v{T+1}, v{T}')
                for j in range(4): p(f'v_cvt_pk_bf16_f32 v{a+j}, v{a+2*j}, v{a+2*j+1}')
            def hst(fl):
                for t in range(nt): p(f'buffer_store_dwordx4 {vr(GA[t],4)}, v{vL16}, s[{WS}:{WS+3}], s{sHoff} offen offset:{t*1024}{fl}')
            dual(hst, 'h')
        pend = list(vq.q)
        p(f's_cmp_ge_u32 s{sH}, 22'); p(f's_cbranch_scc1 K2_gu2{grp}')
        gu(3); p(f's_branch K2_gud{grp}')
        p.label(f'K2_gu2{grp}'); gu(2)
        p.label(f'K2_gud{grp}')
        st(p, 4, t0); stamp_real(p, 40, sWave, t0)
        for s in range(8):
            for j in range(4): p(f'v_accvgpr_write_b32 a{AQ+4*s+j}, v{QP[s]+j}')
        p(f'v_mov_b32 v{VL16}, v{vL16}'); p(f'v_mov_b32 v{VDMA}, v{vL16}')
        p(f'v_and_b32 v3, 31, v{vL}'); p(f'v_lshrrev_b32 v4, 5, v{vL}'); p('v_lshlrev_b32 v4, 2, v4'); p('v_sub_u32 v3, v3, v4')
        p(f's_lshl_b32 s38, s{sR32}, 5'); p('v_add_u32 v3, s38, v3'); p('v_cvt_f32_i32 v3, v3'); p('v_add_f32 v3, 0.5, v3')
        p(f'v_mul_f32 v{VT}, 0x{f2u(BIG):08x}, v3')
        p(f'v_mov_b32 v{VK}, v{VL16}'); p(f'v_add_u32 v{VV}, {LDS_V}, v{VL16}')
        p(f's_mov_b32 s{sKdl}, s44'); p(f's_add_u32 s{sVdl}, s44, {LDS_V + 2*VSLOT}')
        p(f's_mov_b32 s{sKsl}, 0'); p(f's_mov_b32 s{sVsl}, {LDS_V}')
        p(f's_mov_b32 s{sThr}, 0x46800000'); p(f's_mov_b32 s{sOOB}, 0x80000000')
        p(f's_add_u32 s{sKbase}, s{sKbase}, {3*16384}'); p(f's_add_u32 s{sVbase}, s{sVbase}, {2*16384}')
        p(f's_mov_b32 s{sKt}, 3'); p(f's_mov_b32 s{sKdma}, s{sKbase}'); p(f's_mov_b32 s{sVdma}, s{sVbase}')
        p(f's_and_b32 s{sS}, s2, 7'); p(f's_lshr_b32 s{sRB}, s2, 5'); p(f's_lshr_b32 s{sCT}, s2, 3'); p(f's_and_b32 s{sCT}, s{sCT}, 3')
        p(f's_lshl_b32 s38, s{sS}, 2'); p('s_mul_i32 s39, s38, 3'); p('s_lshl_b32 s53, s38, 1'); p('s_add_u32 s53, s53, 22'); p('s_cmp_lt_u32 s38, 22'); p(f's_cselect_b32 s{sQ0}, s39, s53')
        p(f's_lshl_b32 s{sWo}, s{sCT}, 8')
        srd(p, SO, 14, 0, 4096*512*2); srd(p, SDn, 22, 0, 1376*512*2)
        wtr_addr_setup(p, v3W, vL, 12, 13, True)
        wdma_addr_setup(p, v3D, vL, 12, 13, 1024)
    G3 = {}
    p(f's_cmp_ge_u32 s{sWave}, 4'); p('s_cbranch_scc1 K2_B')
    phase12('A')
    attention(p, True, 'A', tokwait=True)
    p(f's_sub_u32 s{sIt}, s{sNT}, s{sNTw}')
    dma_group(p); dma_advance(p)
    epilogue(p, lambda fn: dual(fn, 'c'))
    p('s_waitcnt vmcnt(16)'); p('s_barrier')
    dma_group(p); dma_advance(p)
    p(f's_lshl_b32 s53, s{sWave}, 11'); p('s_add_u32 s54, s53, 8192')
    for g in range(3):
        dmaW3(g, 53, tok=False); dmaW3(g, 54, tok=False)
    npf = 0
    if PF:
        p(f'v_lshlrev_b32 v{T2}, 7, v{vL}'); p('s_lshr_b32 s38, s2, 3'); p('s_lshl_b32 s39, s38, 14'); p(f's_lshl_b32 s55, s{sS}, 19'); p('s_add_u32 s39, s39, s55')
        p(f's_and_b32 s55, s{sWave}, 1'); p('s_lshl_b32 s55, s55, 13'); p('s_add_u32 s39, s39, s55')
        p(f'buffer_load_dword v{T3}, v{T2}, s[{SO}:{SO+3}], s39 offen')
        p('s_mul_i32 s39, s38, 6144'); p(f's_lshl_b32 s55, s{sQ0}, 14'); p('s_add_u32 s39, s39, s55')
        p(f'buffer_load_dword v{T3}, v{T2}, s[{SDn}:{SDn+3}], s39 offen')
        npf = 2
    p(f's_waitcnt vmcnt({20 + npf})'); p('s_barrier')
    p(f's_lshr_b32 s55, s{sI}, 1'); p(f's_lshl_b32 s38, s{sS}, 3'); p('s_add_u32 s55, s55, s38'); p('s_lshl_b32 s55, s55, 7'); p(f's_add_u32 s55, s55, {CNT_S3}')
    only('w0', lambda: sy.arrive(WS, 's55', T0, T1))
    if 'wbl2' in FXE:
        p(f's_cmp_lg_u32 s{sWave}, 3'); p('s_cbranch_scc1 NOWB'); p('buffer_wbl2 sc1'); p.label('NOWB')
    p(f's_sub_u32 s{sIt}, s{sIt}, 2'); p(f's_cmp_eq_u32 s{sIt}, 0'); p('s_cbranch_scc1 A_done')
    p.label('A_ld')
    dma_group(p); dma_advance(p)
    if 'noldw' not in FXE: p('s_waitcnt vmcnt(8)')
    p('s_barrier')
    p(f's_sub_u32 s{sIt}, s{sIt}, 1'); p(f's_cmp_lg_u32 s{sIt}, 0'); p('s_cbranch_scc1 A_ld')
    p.label('A_done')
    p('s_branch K3_start')
    rare_paths(p, 'A')
    p.label('K2_B')
    phase12('B')
    if 'noprio' not in FXE: p('s_setprio 2')
    attention(p, False, 'B')
    if 'noprio' not in FXE: p('s_setprio 0')
    st(p, 5, 100); stamp_real(p, 41, sWave, 100)
    epilogue(p, lambda fn: dual(fn, 'c'))
    p('s_branch K3_start')
    rare_paths(p, 'B')
    p.label('K3_start')
    p('s_waitcnt vmcnt(0)'); p('s_barrier')
    st(p, 6, 100)
    def s3():
        p(f's_sub_u32 s55, 15, s{sI}'); p('s_lshr_b32 s55, s55, 1'); p(f's_lshl_b32 s38, s{sS}, 3'); p('s_add_u32 s55, s55, s38'); p('s_lshl_b32 s55, s55, 7'); p(f's_add_u32 s55, s55, {CNT_S3}')
        sy.arrive(WS, 's55', 16, 17)
        p(f's_lshl_b32 s38, s{sS}, 3'); p(f's_add_u32 s55, s{sRB}, s38'); p('s_lshl_b32 s55, s55, 7'); p(f's_add_u32 s55, s55, {CNT_S3}')
        sy.spin(WS, 's55', 16, 17, 8)
    only('w0', s3)
    p('s_barrier')
    sAoff, sT3, sR3, sAh = 53, 54, 64, 55
    p(f's_lshl_b32 s38, s{sRB}, 3'); p(f's_add_u32 s{sR3}, s38, s{sWave}'); p(f's_mul_i32 s38, s{sR3}, {NKS}')
    p(f's_lshl_b32 s39, s{sS}, 5'); p('s_add_u32 s39, s39, s38'); p(f's_lshl_b32 s{sAoff}, s39, 10'); p(f's_add_u32 s{sAoff}, s{sAoff}, {WS_AF}')
    p(f's_add_u32 s39, s38, s{sQ0}'); p('s_add_u32 s39, s39, 256'); p(f's_lshl_b32 s{sAh}, s39, 10'); p(f's_add_u32 s{sAh}, s{sAh}, {WS_AF}')
    p(f's_lshl_b32 s{sT3}, s{sWave}, 11')
    def itemsA(g):
        it = []
        for q in range(4):
            pre = [f's_add_u32 s38, s{sAoff}, {g*4096}'] if g < 8 else [f's_add_u32 s38, s{sAh}, {(g-8)*4096}']
            if g == 10:
                pre += [f's_cmp_lt_u32 s{sS}, {5 if q >= 2 else 6}', f's_cselect_b32 s38, s38, s{sOOB}']
            it.append((pre, f'buffer_load_dwordx4 {ar(16*(g%4)+4*q,4)}, v{vL16}, s[{WS}:{WS+3}], s38 offen offset:{q*1024} sc1', f'AL{g}'))
        return it
    for c in range(3): emit_items(itemsA(c))
    st(p, 7, 100)
    NCH = 11
    for n in range(4): p(f'v_add_u32 v{v3W+n}, 98304, v{v3W+n}')
    def wread3(m):
        g, r = divmod(m, 16); s, n = divmod(r, 4)
        b = WF + 4 * (m % 8); off = SLOT3[g % 4] - 98304 + s * 4096
        p(f'ds_read_b64_tr_b16 {vr(b,2)}, v{v3W+n} offset:{off}')
        p(f'ds_read_b64_tr_b16 {vr(b+2,2)}, v{v3W+n} offset:{off+2048}')
    def phase3(grp):
        vq = VQ(grp)
        for m in range(PDW): wread3(m)
        for g in range(NCH):
            assert not any(it[2] == f'AL{g}' for it, t in vq.q), ('AL', g)
            for r in range(16):
                m = g * 16 + r; s, n = divmod(r, 4)
                a = vr(ACC + 16 * n, 16); wf = vr(WF + 4 * (m % 8), 4); xf = ar(16 * (g % 4) + 4 * s, 4)
                cin = a if not (g == 0 and s == 0) else '0'
                p(f'v_mfma_f32_32x32x16_bf16 {a}, {wf}, {xf}, {cin}')
                if r == 16 - PDW - 1 and g < NCH - 1:
                    if g + 1 >= 3: p.waittok(f'X{g+1}')
                    p('s_barrier')
                if m + PDW < NCH * 16: wread3(m + PDW)
                if r == 16 - PDW and g + 3 < NCH: vq.add(itemsW3(g + 3, sT3), front=True)
                if r == 15 and g + 3 < NCH: vq.add(itemsA(g + 3))
                vq.slot(m)
            if g == 9:
                p(f's_cmp_ge_u32 s{sS}, 6'); p('s_cbranch_scc1 K3_epi')
        p('s_branch K3_epi')
    p(f's_cmp_ge_u32 s{sWave}, 4'); p('s_cbranch_scc1 K3_B')
    phase3('A')
    p.label('K3_B')
    phase3('B')
    p.label('K3_epi')
    p(f's_lshl_b32 s38, s{sS}, 6'); p(f's_add_u32 s38, s38, s{sR3}'); p('s_lshl_b32 s38, s38, 4'); p(f's_lshl_b32 s39, s{sCT}, 2'); p('s_add_u32 s38, s38, s39'); p('s_lshl_b32 s38, s38, 11')
    p(f's_add_u32 s38, s38, {WS_PT}')
    for n in range(4):
        a = ACC + 16 * n
        for j in range(8): p(f'v_cvt_pk_bf16_f32 v{a+j}, v{a+2*j}, v{a+2*j+1}')
        if n == 2: p('s_add_u32 s38, s38, 4096')
        for half in range(2): p(f'buffer_store_dwordx4 {vr(a+4*half,4)}, v{vL16}, s[{WS}:{WS+3}], s38 offen offset:{(n%2)*2048+half*1024}{SC1}')
    st(p, 8, 100); stamp_real(p, 42, sWave, 100)
    SX4, SO4 = SA, SB
    p(f's_mov_b32 s53, s{sS}'); p(f's_mov_b32 s54, s{sRB}'); p(f's_mov_b32 s55, s{sCT}')
    srd(p, SX4, 4, 0, 2048*512*2)
    srd(p, 72, 24, 0, 2048*512*2)
    p('s_lshl_b32 s38, s54, 3'); p('s_add_u32 s40, s38, s53')
    p('s_lshl_b32 s38, s55, 2'); p(f's_and_b32 s39, s{sWave}, 3'); p('s_add_u32 s41, s38, s39')
    p(f's_lshr_b32 s42, s{sWave}, 2')
    p('s_lshl_b32 s38, s40, 15'); p('s_lshl_b32 s39, s41, 6'); p('s_add_u32 s43, s38, s39'); p('s_lshl_b32 s39, s42, 5'); p('s_add_u32 s43, s43, s39')
    p(f'v_and_b32 v3, 31, v{vL}'); p('v_lshlrev_b32 v3, 10, v3'); p(f'v_lshrrev_b32 v4, 5, v{vL}'); p('v_lshlrev_b32 v4, 3, v4'); p('v_add_u32 v3, v3, v4')
    for g in range(2): p(f'buffer_load_dwordx2 {vr(8+2*g,2)}, v3, s[{SX4}:{SX4+3}], s43 offen offset:{g*16}')
    p('s_waitcnt vmcnt(0)'); p('s_barrier')
    st(p, 11, 100)
    def s4():
        p('s_lshl_b32 s38, s54, 2'); p('s_add_u32 s38, s38, s55'); p('s_lshl_b32 s44, s38, 7'); p(f's_add_u32 s44, s44, {CNT_S4}')
        sy.arrive(WS, 's44', 16, 17)
        sy.spin(WS, 's44', 16, 17, 8)
    only('w0', s4)
    p('s_barrier')
    st(p, 12, 100)
    p('s_lshl_b32 s38, s40, 4'); p('s_add_u32 s38, s38, s41'); p('s_lshl_b32 s38, s38, 11'); p('s_lshl_b32 s39, s42, 10'); p('s_add_u32 s38, s38, s39'); p(f's_add_u32 s38, s38, {WS_PT}')
    for s in range(8):
        p(f'buffer_load_dwordx4 {vr(16+4*s,4)}, v{vL16}, s[{WS}:{WS+3}], s38 offen sc1')
        if s < 7: p(f's_add_u32 s38, s38, {64*16*2048}')
    A = 64
    for j in range(4):
        p(f'v_lshlrev_b32 v{A+2*j}, 16, v{8+j}'); p(f'v_and_b32 v{A+2*j+1}, 0xffff0000, v{8+j}')
    for s in range(8):
        for j in range(4):
            src = 16 + 4 * s + j
            p(f'v_lshlrev_b32 v5, 16, v{src}'); p(f'v_and_b32 v6, 0xffff0000, v{src}')
            p(f'v_add_f32 v{A+2*j}, v{A+2*j}, v5'); p(f'v_add_f32 v{A+2*j+1}, v{A+2*j+1}, v6')
    for j in range(4): p(f'v_cvt_pk_bf16_f32 v{8+j}, v{A+2*j}, v{A+2*j+1}')
    for g in range(2): p(f'buffer_store_dwordx2 {vr(8+2*g,2)}, v3, s[72:75], s43 offen offset:{g*16}')
    st(p, 9, 100); stamp_real(p, 10, sWave, 100)
    p.label('K_end'); p('s_endpgm')
    for i in p.ins:
        if 'sc1_ATOM' in i.text: i.text = i.text.replace('sc1_ATOM', 'sc1')
    p.finalize()
    return p

if __name__ == '__main__':
    out = [a for a in sys.argv[1:] if not a.startswith('-')][0]
    p = build()
    hdr = open('parallel_sum__compressed_kv_cla__swiglu_ffn__prompt.s.ref').read().split('; Override')[0]
    if '-l' in sys.argv: s = hdr + f'; @launch kernel={NAME} grid=(256,1,1) block=(512,1,1) lds=163840\n'
    else: s = hdr + f'; @launch grid=(256,1,1) block=(512,1,1) lds=163840\n'
    s += '.amdgcn_target "amdgcn-amd-amdhsa--gfx950"\n' + kernel_head(NAME) + p.text() + kernel_desc(NAME, 128, 128)
    open(out, 'w').write(s)
    print('written', out, len(s), 'instrs', len(p.ins))
```

```python
import sys, os
sys.path.insert(0, 'gen')
import common
common.STAMPS = '-s' in sys.argv
from common import *
from attn import *
import attn
NAME = 'parallel_sum__compressed_kv_cla__swiglu_ffn__prompt_kernel'
QSCALE = 128 ** -0.5 * 1.4426950408889634
WS = 28; DBG = 32
SA, SB, SC, SD, SE, SF = 48, 52, 68, 72, 76, 80
SC1 = '' if 'nosc1' in os.environ.get('FX', '') else ' sc1'
NOINV = 'noinv' in os.environ.get('FX', '')
attn.STSC = SC1
SPIN_LIMIT = 1 << 18
CNT_S2, CNT_S3, CNT_S4 = WS_CNT, WS_CNT + 32 * 128, WS_CNT + 96 * 128
sFast = 96
LD1 = ' sc1'
PF = 'nopf' not in os.environ.get('FX', '')
FORCE = os.environ.get('FORCE', '')
FXE = os.environ.get('FX', '')
vAT, vONE, vPOLL, vZ = 124, 125, 126, 127

def st(p, idx, vt):
    stamp(p, idx, sWave, vt)

class Sync:
    def __init__(self, p): self.p = p; self.n = 0; self.tail = []
    def arrive(self, srdn, soff, t0, t1, val='1'):
        p = self.p
        p(f'v_mbcnt_lo_u32_b32 v{t0}, -1, 0'); p(f'v_mbcnt_hi_u32_b32 v{t0}, -1, v{t0}')
        p(f'v_cmp_eq_u32 vcc, 0, v{t0}'); p(f'v_mov_b32 v{t1}, 0x7fffff00')
        p(f'v_cndmask_b32 v{t0}, v{t1}, v{t0}, vcc')
        p(f'v_mov_b32 v{t1}, {val}')
        p(f'buffer_atomic_add v{t1}, v{t0}, s[{srdn}:{srdn+3}], {soff} offen sc1_ATOM', tokdef='ATOM')
    def poll_issue(self, srdn, soff, vp, vz):
        p = self.p
        p(f'v_mov_b32 v{vz}, 0')
        p(f'buffer_load_dword v{vp}, v{vz}, s[{srdn}:{srdn+3}], {soff} offen sc1')
    def poll_check(self, srdn, soff, vp, vz, target, mask=None):
        p = self.p; self.n += 1; L = f'SY{self.n}'
        p(f'v_readfirstlane_b32 s38, v{vp}')
        if mask: p(f's_and_b32 s39, s38, {mask}'); p(f's_cmp_ge_u32 s39, {target}')
        else: p(f's_cmp_ge_u32 s38, {target}')
        p(f's_cbranch_scc1 {L}_ok')
        self.spin(srdn, soff, vp, vz, target, mask)
        p.label(f'{L}_ok')
    def spin(self, srdn, soff, vp, vz, target, mask=None):
        p = self.p; self.n += 1; L = f'SP{self.n}'
        p('s_mov_b32 s95, 0'); p(f'v_mov_b32 v{vz}, 0')
        p.label(L)
        p(f'buffer_load_dword v{vp}, v{vz}, s[{srdn}:{srdn+3}], {soff} offen sc1')
        p(f'v_readfirstlane_b32 s38, v{vp}')
        if mask: p(f's_and_b32 s39, s38, {mask}'); p(f's_cmp_ge_u32 s39, {target}')
        else: p(f's_cmp_ge_u32 s38, {target}')
        p(f's_cbranch_scc1 {L}_d')
        p('s_add_u32 s95, s95, 1'); p(f's_cmp_lt_u32 s95, {SPIN_LIMIT}'); p(f's_cbranch_scc1 {L}')
        p.label(f'{L}_d')

def build():
    p = Prog(); sy = Sync(p)
    lab = [0]
    def only(cond, fn):
        lab[0] += 1; L = f'ON{lab[0]}'
        if cond == 'w0': p(f's_cmp_lg_u32 s{sWave}, 0')
        elif cond == 'w3': p(f's_cmp_lg_u32 s{sWave}, 3')
        else: p(f's_cmp_ge_u32 s{sWave}, 4')
        p(f's_cbranch_scc1 {L}'); fn(); p.label(L)
    vL, vL16 = 1, 2
    def code_pf(lab0, lab1, va, vd, n):
        if 'nocodepf' in FXE: return
        for k in range(n):
            p(f's_mov_b32 s38, {lab0}-{NAME}+{k*8192}'); p(f'v_lshl_add_u32 v{va}, v{vL}, 7, s38')
            p(f's_mov_b32 s38, {lab1}-{NAME}-128'); p(f'v_min_u32 v{va}, s38, v{va}')
            p(f'v_mov_b32 v{va+1}, s101'); p(f'v_add_co_u32 v{va}, vcc, s100, v{va}'); p(f'v_addc_co_u32 v{va+1}, vcc, 0, v{va+1}, vcc')
            p(f'global_load_dword v{vd}, v[{va}:{va+1}], off')
    vW, vWD = 4, 8
    t0, t1, t2, t3 = 18, 19, 20, 21
    WF, ACC = 32, 64
    sWoff, sCoff, sCl, sOut, sT = 65, 67, 57, 56, 39
    sT = 47
    p('s_cmp_ge_u32 s2, 256'); p('s_cbranch_scc1 K_end')
    if 'nocodepf' not in FXE:
        p('s_getpc_b64 s[100:101]')
        p.label('K_pc')
        p(f's_sub_u32 s100, s100, K_pc-{NAME}'); p('s_subb_u32 s101, s101, 0')
        p('s_lshr_b32 s38, s2, 3'); p('s_lshl_b32 s38, s38, 5'); p('v_and_b32 v4, 31, v0'); p('v_add_u32 v4, s38, v4'); p('v_lshlrev_b32 v4, 7, v4')
        p(f's_mov_b32 s38, K_code_end-{NAME}-128'); p('v_min_u32 v4, s38, v4')
        p('v_and_b32 v6, 63, v0'); p('v_lshlrev_b32 v6, 7, v6'); p('v_lshrrev_b32 v7, 6, v0'); p('v_mul_u32_u24 v7, 0x2000, v7'); p('v_add_u32 v6, v6, v7'); p('v_subrev_u32 v6, 0x2000, v6')
        p('v_cmp_gt_u32 vcc, 192, v0'); p('v_cndmask_b32 v6, 0, v6, vcc')
        p('v_cmp_gt_u32 vcc, 64, v0'); p('v_cndmask_b32 v4, v6, v4, vcc')
        p('v_mov_b32 v5, s101'); p('v_add_co_u32 v4, vcc, s100, v4'); p('v_addc_co_u32 v5, vcc, 0, v5, vcc')
        p('global_load_dword v3, v[4:5], off')
    p('s_load_dwordx16 s[4:19], s[0:1], 0'); p('s_load_dwordx8 s[20:27], s[0:1], 64'); p('s_load_dwordx2 s[92:93], s[0:1], 96')
    stamp_init(p)
    p(f'v_lshrrev_b32 v{t0}, 6, v0'); p(f'v_readfirstlane_b32 s{sWave}, v{t0}')
    p(f'v_and_b32 v{vL}, 63, v0'); p(f'v_lshlrev_b32 v{vL16}, 4, v{vL}')
    p('s_and_b32 s38, s2, 7'); p('s_lshl_b32 s38, s38, 2'); p('s_lshr_b32 s39, s2, 3'); p('s_and_b32 s39, s39, 3')
    p(f's_add_u32 s{sH}, s38, s39'); p(f's_lshr_b32 s{sI}, s2, 5')
    wtr_addr_setup(p, vW, vL, t0, t1, False)
    wdma_addr_setup(p, vWD, vL, t0, t1, 8192)
    vCD, vCR, vW1 = 10, 12, 14
    p(f'v_bfe_u32 v{t0}, v{vL}, 4, 2'); p(f'v_and_b32 v{t1}, 3, v{vL}'); p(f'v_xor_b32 v{t0}, v{t0}, v{t1}'); p(f'v_lshlrev_b32 v{t0}, 4, v{t0}')
    p(f'v_lshrrev_b32 v{t1}, 2, v{vL}'); p(f'v_lshl_add_u32 v{vCD}, v{t1}, 10, v{t0}'); p(f'v_add_u32 v{vCD+1}, {16*1024-1024}, v{vCD}')
    SLOT1 = lambda g: ((g + 4) % 5) * 32768
    p(f's_lshl_b32 s{sCl}, s{sWave}, 11')
    p(f'v_and_b32 v{t0}, 31, v{vL}'); p(f'v_bfe_u32 v{t1}, v{vL}, 2, 2'); p(f'v_lshrrev_b32 v{t2}, 5, v{vL}')
    p(f's_add_u32 s38, s{sCl}, {SLOT1(0)}')
    for q in range(2):
        p(f'v_add_u32 v{t3}, {2*q}, v{t2}'); p(f'v_xor_b32 v{t3}, v{t3}, v{t1}'); p(f'v_lshlrev_b32 v{t3}, 4, v{t3}')
        p(f'v_lshl_add_u32 v{t3}, v{t0}, 6, v{t3}'); p(f'v_add_u32 v{vCR+q}, s38, v{t3}')
    for n in range(4): p(f'v_add_u32 v{vW1+n}, {SLOT1(0) + 16384}, v{vW+n}')
    p('s_waitcnt lgkmcnt(0)')
    srd(p, WS, 92, 0, WS_SIZE); srd(p, DBG, 26, 0, 256)
    if common.STAMPS: srd(p, 84, 92, WS_TS, 1 << 20)
    SX, SCK, SUK, SUV, SG, SU = SA, SB, SC, SD, SE, SF
    srd(p, SX, 4, 0, 2048*512*2); srd(p, SCK, 6, 0, 2048*512*2); srd(p, SUK, 10, 0, 512*4096*2); srd(p, SUV, 12, 0, 512*4096*2)
    srd(p, SG, 18, 0, 512*1376*2); srd(p, SU, 20, 0, 512*1376*2)
    if 'PF0' in FXE:
        p(f'v_lshlrev_b32 v26, 7, v{vL}')
        p(f's_cmp_eq_u32 s{sWave}, 0'); p('s_cbranch_scc0 PZ1'); p('s_lshl_b32 s38, s2, 13'); p(f'buffer_load_dword v3, v26, s[{SCK}:{SCK+3}], s38 offen'); p.label('PZ1')
        p(f's_lshl_b32 s38, s2, 14'); p(f's_and_b32 s39, s{sWave}, 1'); p('s_lshl_b32 s39, s39, 13'); p('s_add_u32 s38, s38, s39'); p(f's_lshr_b32 s39, s{sWave}, 1')
        p('s_cmp_eq_u32 s39, 1'); p('s_cbranch_scc0 PZ2'); p(f'buffer_load_dword v3, v26, s[{SUK}:{SUK+3}], s38 offen'); p.label('PZ2')
        p('s_cmp_eq_u32 s39, 2'); p('s_cbranch_scc0 PZ3'); p(f'buffer_load_dword v3, v26, s[{SUV}:{SUV+3}], s38 offen'); p.label('PZ3')
    p(f's_lshl_b32 s38, s{sH}, 8'); p(f's_lshl_b32 s39, s{sWave}, 16'); p(f's_add_u32 s{sWoff}, s38, s39')
    p(f's_lshl_b32 s38, s{sI}, 18'); p(f's_lshl_b32 s39, s{sWave}, 15'); p(f's_add_u32 s{sCoff}, s38, s39')
    p(f's_lshl_b32 s{sT}, s{sWave}, 11')
    sW1 = 99
    p(f's_lshl_b32 s38, s{sH}, 8'); p(f's_lshl_b32 s39, s{sWave}, 15'); p(f's_add_u32 s{sW1}, s38, s39')
    SWQ = SA
    def itemsW(g):
        srdn = SUK if g < 8 else (SUV if g < 16 else SWQ)
        return [([f's_add_u32 m0, s{sT}, {(g % 4) * 16384}', f's_add_u32 s38, s{sWoff}, {(g % 8) * 64 * 8192}'],
                 f'buffer_load_dwordx4 v{vWD+tt}, s[{srdn}:{srdn+3}], s38 offen offset:{tt*1024} lds', f'W{g}') for tt in range(2)]
    def items1(g):
        b = SLOT1(g)
        it = [([f's_add_u32 m0, s{sCl}, {b}', f's_add_u32 s38, s{sCoff}, {g * 64}'],
               f'buffer_load_dwordx4 v{vCD+t}, s[{SCK}:{SCK+3}], s38 offen offset:{t*1024} lds', f'H{g}') for t in range(2)]
        for part, srdn in ((0, SUK), (1, SUV)):
            it.append(([f's_lshr_b32 s39, s{sCl}, 1', f's_add_u32 m0, s39, {b + 16384 + part * 8192}', f's_add_u32 s38, s{sW1}, {g * 32 * 8192}'],
                       f'buffer_load_dwordx4 v{vWD}, s[{srdn}:{srdn+3}], s38 offen lds', f'H{g}'))
        return it
    def emit_items(items):
        for pre, ins, tok in items:
            for x in pre: p(x)
            p(ins, tokdef=tok)
    def dmaW(g): emit_items(itemsW(g))
    sXv = 97
    p(f's_getreg_b32 s{sXv}, hwreg(HW_REG_XCC_ID, 0, 4)')
    p('v_mov_b32 v22, 0'); p('v_mov_b32 v23, 0')
    X = 64
    p(f's_lshl_b32 s40, s2, 3'); p(f's_add_u32 s40, s40, s{sWave}'); p(f's_lshl_b32 s41, s40, 10')
    p(f'buffer_load_dwordx4 {vr(X,4)}, v{vL16}, s[{SX}:{SX+3}], s41 offen')
    G = 96
    p('s_lshr_b32 s42, s2, 3'); p('s_and_b32 s43, s2, 7'); p('s_lshl_b32 s43, s43, 6')
    p('s_mul_i32 s44, s42, 3'); p('s_lshl_b32 s45, s42, 1'); p('s_add_u32 s45, s45, 22'); p('s_cmp_lt_u32 s42, 22'); p('s_cselect_b32 s44, s44, s45')
    p('s_lshl_b32 s45, s42, 9'); p('s_add_u32 s45, s45, s43'); p('s_mul_i32 s45, s45, 192'); p(f's_add_u32 s45, s45, {WS_GU}')
    p('s_mov_b32 s46, 43691')
    for j in range(2):
        b = G + 16 * j
        p(f's_lshl_b32 s38, s{sWave}, 6'); p(f's_add_u32 s38, s38, {512*j}'); p(f'v_add_u32 v{b}, s38, v{vL}')
        p(f'v_mul_lo_u32 v{b+1}, v{b}, s46'); p(f'v_lshrrev_b32 v{b+1}, 19, v{b+1}')
        p(f'v_mul_u32_u24 v{b+2}, 12, v{b+1}'); p(f'v_sub_u32 v{b+2}, v{b}, v{b+2}')
        p(f'v_add_u32 v{b+1}, s43, v{b+1}'); p(f'v_mul_u32_u24 v{b+1}, 2752, v{b+1}')
        p(f'v_lshrrev_b32 v{b+3}, 2, v{b+2}'); p(f'v_add_u32 v{b+3}, s44, v{b+3}'); p(f'v_lshlrev_b32 v{b+3}, 5, v{b+3}')
        p(f'v_and_b32 v{b+4}, 1, v{b+2}'); p(f'v_lshlrev_b32 v{b+4}, 4, v{b+4}')
        p(f'v_add3_u32 v{b+1}, v{b+1}, v{b+3}, v{b+4}')
        p(f'v_mov_b32 v{b+5}, 0x7fffff00')
        p(f'v_cmp_gt_u32 vcc, 768, v{b}'); p(f'v_cndmask_b32 v{b+1}, v{b+5}, v{b+1}, vcc')
        p(f'v_lshlrev_b32 v{b}, 4, v{b}'); p(f'v_cndmask_b32 v{b}, v{b+5}, v{b}, vcc')
        p(f'v_and_b32 v{b+2}, 2, v{b+2}'); p(f'v_cmp_eq_u32 vcc, 0, v{b+2}')
        p(f'v_cndmask_b32 v{b+3}, v{b+5}, v{b+1}, vcc'); p(f'v_cndmask_b32 v{b+4}, v{b+1}, v{b+5}, vcc')
        p(f'buffer_load_dwordx4 {vr(b+8,4)}, v{b+3}, s[{SG}:{SG+3}], 0 offen')
        p(f'buffer_load_dwordx4 {vr(b+12,4)}, v{b+4}, s[{SU}:{SU+3}], 0 offen')
    emit_items(items1(0) + items1(1))
    early = []
    def wave_sum_i(v, t):
        nonlocal early
        for rr in (8, 4, 2, 1):
            p(f'v_add_f32_dpp v{v}, v{v}, v{v} row_ror:{rr} row_mask:0xf bank_mask:0xf')
        p(f'v_mov_b32 v{t}, v{v}'); p(f'v_permlane16_swap_b32 v{v}, v{t}'); p(f'v_add_f32 v{v}, v{v}, v{t}')
        p(f'v_mov_b32 v{t}, v{v}'); p(f'v_permlane32_swap_b32 v{v}, v{t}'); p(f'v_add_f32 v{v}, v{v}, v{t}')
    F = 72
    for j in range(4):
        p(f'v_lshlrev_b32 v{F+2*j}, 16, v{X+j}'); p(f'v_and_b32 v{F+2*j+1}, 0xffff0000, v{X+j}')
    p(f'v_add_f32 v{t0}, v{F}, v{F+1}')
    for j in range(2, 8): p(f'v_add_f32 v{t0}, v{t0}, v{F+j}')
    wave_sum_i(t0, t1)
    p(f'v_mul_f32 v{t0}, 0x{f2u(1/512):08x}, v{t0}')
    for j in range(8): p(f'v_sub_f32 v{F+j}, v{F+j}, v{t0}')
    p(f'v_mul_f32 v{t2}, v{F}, v{F}')
    for j in range(1, 8): p(f'v_fmac_f32 v{t2}, v{F+j}, v{F+j}')
    wave_sum_i(t2, t1)
    emit_items(items1(2))
    p(f'v_mov_b32 v{t3}, 0x{f2u(1e-5):08x}')
    p(f'v_fmac_f32 v{t3}, 0x{f2u(1/512):08x}, v{t2}')
    p(f'v_rsq_f32 v{t3}, v{t3}')
    for j in range(8): p(f'v_mul_f32 v{F+j}, v{F+j}, v{t3}')
    for j in range(4): p(f'v_cvt_pk_bf16_f32 v{X+j}, v{F+2*j}, v{F+2*j+1}')
    p(f'v_lshlrev_b32 v{t0}, 7, v{vL}'); p(f's_lshl_b32 s38, s{sWave}, 4'); p('s_add_u32 s38, s38, 98304'); p(f'v_add_u32 v{t0}, s38, v{t0}')
    p(f'ds_write_b128 v{t0}, {vr(X,4)}')
    for j in range(2):
        b = G + 16 * j
        for q in range(4): p(f'v_or_b32 v{b+8+q}, v{b+8+q}, v{b+12+q}')
        p(f'buffer_store_dwordx4 {vr(b+8,4)}, v{b}, s[{WS}:{WS+3}], s45 offen{SC1}')
    p(f'v_mov_b32 v{t1}, 0x7fffff00'); p(f's_lshl_b32 s40, s2, 7'); p(f's_add_u32 s40, s40, {WS_CNT}'); p(f'v_mov_b32 v{t2}, s40')
    p('s_cmp_lt_u32 s2, 128'); p('s_cselect_b32 s41, 1, 0'); p(f'v_cmp_gt_u32 vcc, s41, v0'); p(f'v_cndmask_b32 v{t2}, v{t1}, v{t2}, vcc')
    p(f'v_mov_b32 v{t3}, 0'); p(f'buffer_store_dword v{t3}, v{t2}, s[{WS}:{WS+3}], 0 offen{SC1}')
    srd(p, SWQ, 8, 0, 512*4096*2)
    p(f'v_lshlrev_b32 v26, 7, v{vL}')
    p(f'v_lshrrev_b32 v27, 3, v{vL}'); p('v_lshlrev_b32 v27, 13, v27'); p(f'v_and_b32 v3, 7, v{vL}'); p('v_lshlrev_b32 v3, 7, v3'); p('v_add_u32 v27, v27, v3')
    def itemsPFc():
        return [(['s_lshr_b32 s38, s2, 3', 's_lshl_b32 s38, s38, 16', f's_lshl_b32 s39, s{sWave}, 13', 's_add_u32 s38, s38, s39'],
                 f'buffer_load_dword v3, v26, s[{SCK}:{SCK+3}], s38 offen', None)]
    def itemsPFx():
        return [([f's_lshl_b32 s38, s{sR32}, 15', f's_and_b32 s39, s{sH}, 3', 's_lshl_b32 s39, s39, 13', 's_add_u32 s38, s38, s39', f's_add_u32 s38, s38, {WS_XN}'],
                 f'buffer_load_dword v3, v26, s[{WS}:{WS+3}], s38 offen sc1', None)]
    def itemsPFw(srdn, grp):
        lo = 0 if grp == 'A' else 4
        return [(['s_lshr_b32 s38, s2, 3', 's_lshl_b32 s38, s38, 4', f's_and_b32 s39, s{sWave}, 1', 's_lshl_b32 s39, s39, 3', 's_add_u32 s38, s38, s39', 's_lshl_b32 s38, s38, 13',
                  's_and_b32 s39, s2, 7', 's_lshl_b32 s39, s39, 10', 's_add_u32 s38, s38, s39',
                  f's_and_b32 s39, s{sWave}, 2', 's_cmp_eq_u32 s39, 0', f's_cselect_b32 s38, s38, s{sOOB}'],
                 f'buffer_load_dword v3, v27, s[{srdn}:{srdn+3}], s38 offen', None)]
    p(f's_mov_b32 s{sOOB}, 0x80000000')
    st(p, 0, t0)
    sG0, sGoff, sGl, sHoff = 40, 41, 42, 43
    p('s_sub_u32 s44, 15, s%d' % sI); p(f's_cmp_lt_u32 s{sWave}, 4'); p(f's_cselect_b32 s45, s{sI}, s44')
    p(f's_and_b32 s46, s{sWave}, 3'); p('s_lshl_b32 s38, s45, 2'); p(f's_add_u32 s{sR32}, s38, s46')
    p('s_lshl_b32 s38, s45, 1'); p(f's_add_u32 s{sNTw}, s38, 2')
    if 'noskip' not in FXE:
        p('s_cmp_lt_u32 s46, 2'); p('s_cselect_b32 s39, 1, 0'); p('s_cmp_eq_u32 s45, 0'); p('s_cselect_b32 s39, 0, s39'); p(f's_sub_u32 s{sNTw}, s{sNTw}, s39')
    p('s_lshl_b32 s38, s44, 1'); p(f's_add_u32 s{sNT}, s38, 2')
    p(f's_mul_i32 s38, s{sH}, {512*192}'); p(f's_mul_i32 s39, s{sWave}, 3072'); p(f's_add_u32 s{sGoff}, s38, s39'); p(f's_add_u32 s{sGoff}, s{sGoff}, {WS_GU}'); p(f's_add_u32 s{sGl}, s39, 65536')
    p(f's_mul_i32 s38, s{sH}, 3'); p(f's_lshl_b32 s39, s{sH}, 1'); p('s_add_u32 s39, s39, 22'); p(f's_cmp_lt_u32 s{sH}, 22'); p(f's_cselect_b32 s{sG0}, s38, s39')
    p(f's_mul_i32 s38, s{sR32}, {NKS}'); p(f's_lshl_b32 s39, s{sH}, 3'); p('s_add_u32 s39, s38, s39'); p(f's_lshl_b32 s{sCtxOff}, s39, 10'); p(f's_add_u32 s{sCtxOff}, s{sCtxOff}, {WS_AF}')
    p(f's_add_u32 s38, s38, s{sG0}'); p('s_add_u32 s38, s38, 256'); p(f's_lshl_b32 s{sHoff}, s38, 10'); p(f's_add_u32 s{sHoff}, s{sHoff}, {WS_AF}')
    p(f's_lshl_b32 s38, s{sH}, 19'); p('s_lshl_b32 s39, s46, 12'); p('s_add_u32 s38, s38, s39')
    p(f's_add_u32 s{sKbase}, s38, {WS_KF}'); p(f's_add_u32 s{sVbase}, s38, {WS_VF}')
    p(f's_mov_b32 s{sKdl}, s39'); p(f's_add_u32 s{sVdl}, s39, {LDS_V}') if False else None
    p(f's_mov_b32 s44, s39')
    p(f's_lshl_b32 s38, s{sH}, 6'); p(f's_lshl_b32 s39, s{sI}, 3'); p('s_add_u32 s38, s38, s39'); p(f's_add_u32 s38, s38, s{sWave}')
    p(f's_lshl_b32 s{sOut}, s38, 13')
    def itemsG(c):
        return [([f's_add_u32 m0, s{sGl}, {c * 24576}', f's_add_u32 s38, s{sGoff}, {c * 24576}'],
                 f'buffer_load_dwordx4 v{vL16}, s[{WS}:{WS+3}], s38 offen offset:{j*1024} sc1 lds', f'G{c}') for j in range(3)]
    def itemsX(c):
        return [([f's_lshl_b32 s38, s{sR32}, 15', f's_add_u32 s38, s38, {WS_XN + c*4096}'],
                 f'buffer_load_dwordx4 {ar(4*(4*c+s),4)}, v{vL16}, s[{WS}:{WS+3}], s38 offen offset:{s*1024} sc1', f'XL{c}') for s in range(4)]
    PDW = 4
    NM = 24 * 16
    def wread(m):
        g, r = divmod(m, 16); s, n = divmod(r, 4)
        b = WF + 4 * (m % 8); off = (g % 4) * 16384 + s * 4096
        p(f'ds_read_b64_tr_b16 {vr(b,2)}, v{vW+n} offset:{off}')
        p(f'ds_read_b64_tr_b16 {vr(b+2,2)}, v{vW+n} offset:{off+1024}')
    def cread(c):
        for s in range(4): p(f'ds_read_b128 {ar(4*(4*c+s),4)}, v{vCR+s} offset:{(c % 3) * 4096}')
    def epi(part):
        for n in range(4):
            a = ACC + 16 * n
            for j in range(8): p(f'v_cvt_pk_bf16_f32 v{a+j}, v{a+2*j}, v{a+2*j+1}')
        def stores(fl):
            base = WS_KF if part == 0 else WS_VF
            for hi in range(2):
                p(f's_add_u32 s38, s{sOut}, {base + hi * 4096}')
                for q in range(4):
                    o = hi * 4 + q
                    if part == 0: n, half = o // 2, o % 2
                    else: half, n = o // 4, o % 4
                    p(f'buffer_store_dwordx4 {vr(ACC+16*n+4*half,4)}, v{vL16}, s[{WS}:{WS+3}], s38 offen offset:{q*1024}{fl}')
        dual(stores)
    vP, vPz = 22, 23
    def s1_arrive():
        p(f'v_mbcnt_lo_u32_b32 v{t0}, -1, 0'); p(f'v_mbcnt_hi_u32_b32 v{t0}, -1, v{t0}')
        p(f'v_cmp_eq_u32 vcc, 0, v{t0}'); p(f'v_mov_b32 v{t1}, 0x7fffff00'); p(f'v_cndmask_b32 v{t0}, v{t1}, v{t0}, vcc')
        p(f's_or_b32 s38, s{sXv}, 0x80'); p(f'v_mov_b32 v{t1}, s38')
        p(f'buffer_store_byte v{t1}, v{t0}, s[{DBG}:{DBG+3}], s2 offen sc1')
    def s1_issue():
        p(f'v_lshlrev_b32 v{vPz}, 2, v{vL}')
        p(f'buffer_load_dword v{vP}, v{vPz}, s[{DBG}:{DBG+3}], 0 offen sc1')
    def s1_test(L):
        p(f'v_and_b32 v{t0}, 0x80808080, v{vP}'); p(f'v_mov_b32 v{t1}, 0x80808080')
        p(f'v_cmp_ne_u32 vcc, v{t0}, v{t1}')
        p(f's_cmp_eq_u64 vcc, 0')
    def s1_check():
        lab[0] += 1; L = f'S1c{lab[0]}'
        s1_test(L); p(f's_cbranch_scc1 {L}_ok')
        p('s_mov_b32 s95, 0')
        p.label(f'{L}_sp')
        s1_issue(); s1_test(L); p(f's_cbranch_scc1 {L}_ok')
        p('s_add_u32 s95, s95, 1'); p(f's_cmp_lt_u32 s95, {SPIN_LIMIT}'); p(f's_cbranch_scc1 {L}_sp')
        p.label(f'{L}_ok')
        p('s_and_b32 s38, s2, 3'); p('s_lshl_b32 s38, s38, 3')
        p(f'v_lshrrev_b32 v{t0}, s38, v{vP}'); p(f'v_and_b32 v{t0}, 0x7f, v{t0}')
        p('s_bfe_u32 s39, s2, 0x10002')
        p(f'v_and_b32 v{t1}, 1, v{vL}'); p(f'v_cmp_eq_u32 s[94:95], s39, v{t1}')
        p(f'v_cmp_ne_u32 vcc, s{sXv}, v{t0}')
        p('s_and_b64 vcc, vcc, s[94:95]')
        p('s_cmp_eq_u64 vcc, 0'); p(f's_cselect_b32 s{sFast}, 1, 0')
        if FORCE: p(f's_mov_b32 s{sFast}, {1 if FORCE == "fast" else 0}')
    def dual(fn, kind='kv'):
        if ('slow' + kind) in FXE:
            fn(' sc1'); return
        lab[0] += 1; L = f'DU{lab[0]}'
        p(f's_cmp_eq_u32 s{sFast}, 0'); p(f's_cbranch_scc1 {L}s'); fn(''); p(f's_branch {L}j'); p.label(f'{L}s'); fn(' sc1'); p.label(f'{L}j')
    def itemsKV(which, t, tok):
        if which == 'K': pre = [f's_add_u32 m0, s44, {t*KSLOT}', f's_add_u32 s38, s{sKbase}, {t*16384}']
        else: pre = [f's_add_u32 m0, s44, {LDS_V + t*VSLOT}', f's_add_u32 s38, s{sVbase}, {t*16384}']
        return [(pre, f'buffer_load_dwordx4 v{vL16}, s[{WS}:{WS+3}], s38 offen offset:{j*1024} sc1 lds', tok) for j in range(4)]
    class VQ:
        def __init__(self, grp):
            self.q = []; self.par = 0 if grp == 'A' else 1; self.now = 0
            self.delay = int(os.environ.get('DLY', 6)) if grp == 'B' else 0
        def add(self, items, front=False, nodelay=False):
            items = [(it, self.now + (0 if nodelay else self.delay)) for it in items]
            if front: self.q = items + self.q
            else: self.q += items
        def slot(self, n):
            self.now += 1
            if n % 2 == self.par:
                for k, (it, t) in enumerate(self.q):
                    if t <= self.now:
                        emit_items([it]); self.q.pop(k); break
        def flush(self):
            emit_items([it for it, t in self.q]); self.q = []
    sCn = 45
    p(f's_lshl_b32 s{sCn}, s{sH}, 7'); p(f's_add_u32 s{sCn}, s{sCn}, {CNT_S2}')
    sS, sRB, sCT, sQ0, sWo = 48, 49, 50, 51, 52
    SO, SDn = SC, SD
    SLOT3 = [114688, 131072, 147456, 98304]
    v3W, v3D = 4, 8
    def itemsW3(g, wv, tok=True):
        pre = [f's_add_u32 m0, s{wv}, {SLOT3[g % 4]}', f's_lshl_b32 s39, s{wv}, 2', f's_add_u32 s39, s39, s{sWo}']
        if g < 8: pre += [f's_lshl_b32 s38, s{sS}, 19', f's_add_u32 s38, s38, {g << 16}']; srdn = SO
        else: pre += [f's_lshl_b32 s38, s{sQ0}, 14', f's_add_u32 s38, s38, {(g - 8) << 16}']; srdn = SDn
        pre += ['s_add_u32 s38, s38, s39']
        return [(pre, f'buffer_load_dwordx4 v{v3D+tt}, s[{srdn}:{srdn+3}], s38 offen offset:{tt*1024} lds', f'X{g}' if tok else None) for tt in range(2)]
    def dmaW3(g, wv, tok=True): emit_items(itemsW3(g, wv, tok))
    def code_pf_att(grp):
        lab[0] += 1; L = f'CP{lab[0]}'
        p(f's_and_b32 s38, s{sWave}, 3'); p('s_cmp_lg_u32 s38, 0'); p(f's_cbranch_scc1 {L}')
        code_pf(f'ATT_{grp}', f'ATT_{grp}_end', 26, 3, 2)
        p.label(L)
    def phase12(grp):
        vq = VQ(grp)
        def w0(fn):
            if grp == 'A': only('w0', fn)
        p('s_waitcnt lgkmcnt(0)')
        p.waittok('H0'); p('s_barrier')
        p(f's_lshl_b32 s38, s{sWave}, 10'); p('s_add_u32 s38, s38, 98304'); p(f'v_add_u32 v{t0}, s38, v{vL16}')
        p(f'ds_read_b128 v[28:31], v{t0}')
        p(f'v_lshrrev_b32 v{t0}, 3, v{vL}'); p(f'v_lshlrev_b32 v{t0}, 9, v{t0}'); p(f'v_and_b32 v{t1}, 7, v{vL}'); p(f'v_lshl_add_u32 v{t0}, v{t1}, 4, v{t0}')
        p('s_lshr_b32 s38, s2, 2'); p('s_lshl_b32 s38, s38, 15'); p('s_and_b32 s39, s2, 3'); p('s_lshl_b32 s39, s39, 7'); p('s_add_u32 s38, s38, s39')
        p(f's_lshl_b32 s39, s{sWave}, 12'); p('s_add_u32 s38, s38, s39'); p(f's_add_u32 s38, s38, {WS_XN}')
        p(f'buffer_store_dwordx4 v[28:31], v{t0}, s[{WS}:{WS+3}], s38 offen{SC1}', tokdef='LNST')
        st(p, 13, t0)
        vq.add(items1(3))
        if PF and 'PFc' in FXE: vq.add(itemsPFc())
        CF, WF1 = 32, 48
        def cread1(g):
            for q in range(2): p(f'ds_read_b128 {vr(CF + 8*(g%2) + 4*q, 4)}, v{vCR+q}')
        def wread1(m):
            g, r = divmod(m, 16); q, part, n = r >> 3, (r >> 2) & 1, r & 3
            b = WF1 + 4 * (m % 8); off = part * 8192 + q * 4096
            if 'x1nords' in FXE and m >= 16: return
            p(f'ds_read_b64_tr_b16 {vr(b,2)}, v{vW1+n} offset:{off}')
            p(f'ds_read_b64_tr_b16 {vr(b+2,2)}, v{vW1+n} offset:{off+1024}')
        cread1(0)
        for m in range(PDW): wread1(m)
        vG = 24
        p(f'v_lshrrev_b32 v{t0}, 5, v{vL}'); p(f'v_lshlrev_b32 v{t0}, 3, v{t0}'); p(f'v_bfe_u32 v{t1}, v{vL}, 2, 2'); p(f'v_add_u32 v{t0}, v{t0}, v{t1}')
        p(f'v_mul_u32_u24 v{t0}, 192, v{t0}')
        p(f'v_bfe_u32 v{t1}, v{vL}, 4, 1'); p(f'v_lshlrev_b32 v{t1}, 5, v{t1}'); p(f'v_add_u32 v{t0}, v{t0}, v{t1}')
        p(f'v_and_b32 v{t1}, 3, v{vL}'); p(f'v_lshlrev_b32 v{t1}, 3, v{t1}'); p(f'v_add_u32 v{t0}, v{t0}, v{t1}')
        p(f'v_add_u32 v{vG}, 65536, v{t0}'); p(f'v_add_u32 v{vG+1}, {65536+49152}, v{t0}')
        def vadd(reg, d):
            p(f'v_add_u32 v{reg}, 0x{d & 0xffffffff:x}, v{reg}')
        for g in range(16):
            for r in range(16):
                m = g * 16 + r; q, part, n = r >> 3, (r >> 2) & 1, r & 3
                a = ar(64 * part + 16 * n, 16); wf = vr(WF1 + 4 * (m % 8), 4); cf = vr(CF + 8 * (g % 2) + 4 * q, 4)
                cin = a if not (g == 0 and q == 0) else '0'
                if part == 1: p(f'v_mfma_f32_32x32x16_bf16 {a}, {cf}, {wf}, {cin}')
                else: p(f'v_mfma_f32_32x32x16_bf16 {a}, {wf}, {cf}, {cin}')
                if r == 11 and g < 15:
                    toks = [f'H{g+1}'] + (['LNST'] if g == 3 else [])
                    if 'x1novm' in FXE: toks = ['LNST'] if g == 3 else []
                    if toks: p.waittok(*toks)
                    if 'x1nobar' not in FXE or g == 3: p('s_barrier')
                    d = SLOT1(g + 1) - SLOT1(g)
                    for q2 in range(2): vadd(vCR + q2, d)
                    cread1(g + 1)
                    if g == 3: w0(s1_arrive)
                if m + PDW < 256 and not (r >= 12 and False):
                    if r == 12 and g < 15:
                        for n2 in range(4): vadd(vW1 + n2, SLOT1(g + 1) - SLOT1(g))
                    wread1(m + PDW)
                if r == 12:
                    if g + 4 < 16 and 'x1novm' not in FXE: vq.add(items1(g + 4))
                    if g == 12: vq.add(itemsW(16) + itemsW(17))
                    if g == 13: vq.add(itemsW(18))
                    if PF and g == 6 and grp == 'B' and 'noPFq' not in FXE: vq.add(itemsPFw(SWQ, grp))
                    if PF and g == 0 and 'noPFuk' not in FXE: vq.add(itemsPFw(SUK if grp == 'A' else SUV, grp))
                    if g == 8: s1_issue()
                    if g == 9: s1_check()
                    if PF and g == 10 and 'noPFx' not in FXE: vq.add(itemsPFx())
                vq.slot(m)
            if 'chst' in os.environ.get('FX', ''): st(p, 16 + g, t0)
        vq.flush()
        def epi_half(t, half, T, P_):
            part, n = divmod(t, 4)
            ops = [f'v_accvgpr_read_b32 v{T+j2}, a{16*t+8*half+j2}' for j2 in range(8)]
            ops += [f'v_cvt_pk_bf16_f32 v{P_+j2}, v{T+2*j2}, v{T+2*j2+1}' for j2 in range(4)]
            def stores(fl):
                o = ((2*n + half) if part == 0 else (half * 4 + n)) * 1024
                p(f's_add_u32 s38, s{sOut}, {(WS_KF if part == 0 else WS_VF) + (o & ~4095)}')
                p(f'buffer_store_dwordx4 {vr(P_,4)}, v{vL16}, s[{WS}:{WS+3}], s38 offen offset:{o & 4095}{fl}', tokdef='KVST')
            return ops, stores
        for t in range(3):
            for half in range(2):
                ops, stores = epi_half(t, half, 80 + 8 * ((2*t+half) % 4), 112 + 4 * ((2*t+half) % 4))
                for x in ops: p(x)
                dual(stores)
            emit_items(itemsX(t))
        fill = []
        for t in range(3, 8):
            for half in range(2):
                ops, stores = epi_half(t, half, 10, 28)
                fill += ops + [('st', stores)]
            fill += [('x', t)]
        def filler(k):
            for _ in range(k):
                if not fill: return
                f = fill.pop(0)
                if isinstance(f, tuple):
                    if f[0] == 'st': dual(f[1])
                    else: vq.add(itemsX(f[1]), nodelay=True)
                else: p(f)
        st(p, 2, t0); stamp_real(p, 43, sWave, t0)
        p.waittok('W16'); p('s_barrier')
        for m in range(256, 256 + PDW): wread(m)
        for g in range(16, 24):
            c = g - 16
            assert not any(it[2] == f'XL{c}' for it, t in vq.q), ('XL', c)
            for r in range(16):
                m = g * 16 + r; s, n = divmod(r, 4)
                a = vr(ACC + 16 * n, 16); wf = vr(WF + 4 * (m % 8), 4); cf = ar(4 * (4 * c + s), 4)
                cin = a if not (c == 0 and s == 0) else '0'
                p(f'v_mfma_f32_32x32x16_bf16 {a}, {wf}, {cf}, {cin}')
                if r == 16 - PDW - 1:
                    toks = [f'W{g+1}'] if g < 23 else ['G0', 'G1', 'G2', 'G3']
                    if g == 21:
                        assert not fill
                        toks.append('KVST')
                    p.waittok(*toks); p('s_barrier')
                    if g == 21: w0(lambda: sy.arrive(WS, f's{sCn}', t0, t1))
                if m + PDW < NM: wread(m + PDW)
                if r == 16 - PDW:
                    if g + 3 < 24: vq.add(itemsW(g + 3), front=True)
                    if g == 23: w0(lambda: sy.poll_issue(WS, f's{sCn}', vP, vPz))
                    if g == 22: code_pf_att(grp)
                    if g in (19, 20): vq.add(itemsG(g - 19))
                    if g == 21: vq.add(itemsG(2) + itemsG(3))
                filler(2)
                vq.slot(m)
            if 'chst' in os.environ.get('FX', ''): st(p, 16 + g, t0)
        QP = [104, 108, 120, 124, 96, 100, 112, 116]
        for n in (2, 3, 0, 1):
            a = ACC + 16 * n
            for j in range(16): p(f'v_mul_f32 v{a+j}, 0x{f2u(QSCALE):08x}, v{a+j}')
            for j in range(8): p(f'v_cvt_pk_bf16_f32 v{QP[2*n] + j}, v{a+2*j}, v{a+2*j+1}')
        st(p, 3, t0)
        GA = [64, 80, 0]
        GA[2] = 4
        def gread(m, nt):
            per = 8 * nt; c, r = divmod(m, per); s, t = divmod(r, nt)
            b = WF + 4 * (m % 8); off = (c % 2) * 24576 + s * 3072 + t * 64; a = vG + c // 2
            p(f'ds_read_b64_tr_b16 {vr(b,2)}, v{a} offset:{off}')
            p(f'ds_read_b64_tr_b16 {vr(b+2,2)}, v{a} offset:{off+768}')
        def gu(nt):
            per = 8 * nt; tot = 4 * per
            vq.q = list(pend)
            for m in range(PDW): gread(m, nt)
            for m in range(tot):
                c, r = divmod(m, per); s, t = divmod(r, nt)
                a = vr(GA[t], 16); wf = vr(WF + 4 * (m % 8), 4); xf = ar(4 * (8 * c + s), 4)
                cin = a if not (c == 0 and s == 0) else '0'
                p(f'v_mfma_f32_32x32x16_bf16 {a}, {wf}, {xf}, {cin}')
                if m == 6: w0(lambda: sy.poll_check(WS, f's{sCn}', vP, vPz, 8))
                if r == per - PDW - 1 and c < 2: p('s_barrier')
                if m + PDW < tot: gread(m + PDW, nt)
                if r == per - PDW and c == 0 and grp == 'A': vq.add(itemsKV('K', 0, 'K0') + itemsKV('K', 1, 'K1') + itemsKV('V', 0, 'V0') + itemsKV('K', 2, 'K2'))
                if r == per - PDW and c == 1 and grp == 'A': vq.add(itemsKV('V', 1, 'V1'))
                vq.slot(m)
            vq.flush()
            for t in range(nt):
                a = GA[t]
                for j in range(8):
                    T = WF + 4 * (j % 4)
                    p(f'v_mul_f32 v{T}, 0x{f2u(-1.4426950408889634):08x}, v{a+j}')
                    p(f'v_exp_f32 v{T}, v{T}')
                    p(f'v_mul_f32 v{T+1}, v{a+j}, v{a+8+j}')
                    p(f'v_add_f32 v{T}, 1.0, v{T}')
                    p(f'v_rcp_f32 v{T}, v{T}')
                    p(f'v_mul_f32 v{a+j}, v{T+1}, v{T}')
                for j in range(4): p(f'v_cvt_pk_bf16_f32 v{a+j}, v{a+2*j}, v{a+2*j+1}')
            def hst(fl):
                for t in range(nt): p(f'buffer_store_dwordx4 {vr(GA[t],4)}, v{vL16}, s[{WS}:{WS+3}], s{sHoff} offen offset:{t*1024}{fl}')
            dual(hst, 'h')
        pend = list(vq.q)
        p(f's_cmp_ge_u32 s{sH}, 22'); p(f's_cbranch_scc1 K2_gu2{grp}')
        gu(3); p(f's_branch K2_gud{grp}')
        p.label(f'K2_gu2{grp}'); gu(2)
        p.label(f'K2_gud{grp}')
        st(p, 4, t0); stamp_real(p, 40, sWave, t0)
        for s in range(8):
            for j in range(4): p(f'v_accvgpr_write_b32 a{AQ+4*s+j}, v{QP[s]+j}')
        p(f'v_mov_b32 v{VL16}, v{vL16}'); p(f'v_mov_b32 v{VDMA}, v{vL16}')
        p(f'v_and_b32 v3, 31, v{vL}'); p(f'v_lshrrev_b32 v4, 5, v{vL}'); p('v_lshlrev_b32 v4, 2, v4'); p('v_sub_u32 v3, v3, v4')
        p(f's_lshl_b32 s38, s{sR32}, 5'); p('v_add_u32 v3, s38, v3'); p('v_cvt_f32_i32 v3, v3'); p('v_add_f32 v3, 0.5, v3')
        p(f'v_mul_f32 v{VT}, 0x{f2u(BIG):08x}, v3')
        p(f'v_mov_b32 v{VK}, v{VL16}'); p(f'v_add_u32 v{VV}, {LDS_V}, v{VL16}')
        p(f's_mov_b32 s{sKdl}, s44'); p(f's_add_u32 s{sVdl}, s44, {LDS_V + 2*VSLOT}')
        p(f's_mov_b32 s{sKsl}, 0'); p(f's_mov_b32 s{sVsl}, {LDS_V}')
        p(f's_mov_b32 s{sThr}, 0x46800000'); p(f's_mov_b32 s{sOOB}, 0x80000000')
        p(f's_add_u32 s{sKbase}, s{sKbase}, {3*16384}'); p(f's_add_u32 s{sVbase}, s{sVbase}, {2*16384}')
        p(f's_mov_b32 s{sKt}, 3'); p(f's_mov_b32 s{sKdma}, s{sKbase}'); p(f's_mov_b32 s{sVdma}, s{sVbase}')
        p(f's_and_b32 s{sS}, s2, 7'); p(f's_lshr_b32 s{sRB}, s2, 5'); p(f's_lshr_b32 s{sCT}, s2, 3'); p(f's_and_b32 s{sCT}, s{sCT}, 3')
        p(f's_lshl_b32 s38, s{sS}, 2'); p('s_mul_i32 s39, s38, 3'); p('s_lshl_b32 s53, s38, 1'); p('s_add_u32 s53, s53, 22'); p('s_cmp_lt_u32 s38, 22'); p(f's_cselect_b32 s{sQ0}, s39, s53')
        p(f's_lshl_b32 s{sWo}, s{sCT}, 8')
        srd(p, SO, 14, 0, 4096*512*2); srd(p, SDn, 22, 0, 1376*512*2)
        wtr_addr_setup(p, v3W, vL, 12, 13, True)
        wdma_addr_setup(p, v3D, vL, 12, 13, 1024)
    G3 = {}
    p(f's_cmp_ge_u32 s{sWave}, 4'); p('s_cbranch_scc1 K2_B')
    phase12('A')
    p.label('ATT_A')
    attention(p, True, 'A', tokwait=True)
    p(f's_sub_u32 s{sIt}, s{sNT}, s{sNTw}')
    dma_group(p); dma_advance(p)
    epilogue(p, lambda fn: dual(fn, 'c'))
    p('s_waitcnt vmcnt(16)'); p('s_barrier')
    dma_group(p); dma_advance(p)
    p(f's_lshl_b32 s53, s{sWave}, 11'); p('s_add_u32 s54, s53, 8192')
    for g in range(3):
        dmaW3(g, 53, tok=False); dmaW3(g, 54, tok=False)
    npf = 0
    if PF:
        p(f'v_lshlrev_b32 v{T2}, 7, v{vL}'); p('s_lshr_b32 s38, s2, 3'); p('s_lshl_b32 s39, s38, 14'); p(f's_lshl_b32 s55, s{sS}, 19'); p('s_add_u32 s39, s39, s55')
        p(f's_and_b32 s55, s{sWave}, 1'); p('s_lshl_b32 s55, s55, 13'); p('s_add_u32 s39, s39, s55')
        p(f'buffer_load_dword v{T3}, v{T2}, s[{SO}:{SO+3}], s39 offen')
        p('s_mul_i32 s39, s38, 6144'); p(f's_lshl_b32 s55, s{sQ0}, 14'); p('s_add_u32 s39, s39, s55')
        p(f'buffer_load_dword v{T3}, v{T2}, s[{SDn}:{SDn+3}], s39 offen')
        npf = 2
    p(f's_waitcnt vmcnt({20 + npf})'); p('s_barrier')
    p(f's_lshr_b32 s55, s{sI}, 1'); p(f's_lshl_b32 s38, s{sS}, 3'); p('s_add_u32 s55, s55, s38'); p('s_lshl_b32 s55, s55, 7'); p(f's_add_u32 s55, s55, {CNT_S3}')
    only('w3', lambda: sy.arrive(WS, 's55', T0, T1))
    if 'wbl2' in FXE:
        p(f's_cmp_lg_u32 s{sWave}, 3'); p('s_cbranch_scc1 NOWB'); p('buffer_wbl2 sc1'); p.label('NOWB')
    p(f's_sub_u32 s{sIt}, s{sIt}, 2'); p(f's_cmp_eq_u32 s{sIt}, 0'); p('s_cbranch_scc1 A_done')
    p.label('A_ld')
    dma_group(p); dma_advance(p)
    if 'noldw' not in FXE: p('s_waitcnt vmcnt(8)')
    p('s_barrier')
    p(f's_sub_u32 s{sIt}, s{sIt}, 1'); p(f's_cmp_lg_u32 s{sIt}, 0'); p('s_cbranch_scc1 A_ld')
    p.label('A_done')
    only('w0', lambda: code_pf('K3_start', 'K_code_end', 16, 18, 3))
    p('s_branch K3_start')
    p.label('ATT_A_end')
    rare_paths(p, 'A')
    p.label('K2_B')
    phase12('B')
    p.label('ATT_B')
    if 'noprio' not in FXE: p('s_setprio 2')
    attention(p, False, 'B')
    if 'noprio' not in FXE: p('s_setprio 0')
    st(p, 5, 100); stamp_real(p, 41, sWave, 100)
    p(f's_cmp_eq_u32 s{sNTw}, s{sNT}'); p('s_cbranch_scc1 B_noxb'); p('s_barrier'); p.label('B_noxb')
    epilogue(p, lambda fn: dual(fn, 'c'))
    p('s_branch K3_start')
    p.label('ATT_B_end')
    rare_paths(p, 'B')
    p.label('K3_start')
    p('s_waitcnt vmcnt(0)'); p('s_barrier')
    st(p, 6, 100)
    def s3():
        p(f's_sub_u32 s55, 15, s{sI}'); p('s_lshr_b32 s55, s55, 1'); p(f's_lshl_b32 s38, s{sS}, 3'); p('s_add_u32 s55, s55, s38'); p('s_lshl_b32 s55, s55, 7'); p(f's_add_u32 s55, s55, {CNT_S3}')
        sy.arrive(WS, 's55', 16, 17)
        p(f's_lshl_b32 s38, s{sS}, 3'); p(f's_add_u32 s55, s{sRB}, s38'); p('s_lshl_b32 s55, s55, 7'); p(f's_add_u32 s55, s55, {CNT_S3}')
        sy.spin(WS, 's55', 16, 17, 8)
    only('w0', s3)
    p('s_barrier')
    sAoff, sT3, sR3, sAh = 53, 54, 64, 55
    p(f's_lshl_b32 s38, s{sRB}, 3'); p(f's_add_u32 s{sR3}, s38, s{sWave}'); p(f's_mul_i32 s38, s{sR3}, {NKS}')
    p(f's_lshl_b32 s39, s{sS}, 5'); p('s_add_u32 s39, s39, s38'); p(f's_lshl_b32 s{sAoff}, s39, 10'); p(f's_add_u32 s{sAoff}, s{sAoff}, {WS_AF}')
    p(f's_add_u32 s39, s38, s{sQ0}'); p('s_add_u32 s39, s39, 256'); p(f's_lshl_b32 s{sAh}, s39, 10'); p(f's_add_u32 s{sAh}, s{sAh}, {WS_AF}')
    p(f's_lshl_b32 s{sT3}, s{sWave}, 11')
    def itemsA(g):
        it = []
        for q in range(4):
            pre = [f's_add_u32 s38, s{sAoff}, {g*4096}'] if g < 8 else [f's_add_u32 s38, s{sAh}, {(g-8)*4096}']
            if g == 10:
                pre += [f's_cmp_lt_u32 s{sS}, {5 if q >= 2 else 6}', f's_cselect_b32 s38, s38, s{sOOB}']
            it.append((pre, f'buffer_load_dwordx4 {ar(16*(g%4)+4*q,4)}, v{vL16}, s[{WS}:{WS+3}], s38 offen offset:{q*1024} sc1', f'AL{g}'))
        return it
    for c in range(3): emit_items(itemsA(c))
    st(p, 7, 100)
    NCH = 11
    for n in range(4): p(f'v_add_u32 v{v3W+n}, 98304, v{v3W+n}')
    def wread3(m):
        g, r = divmod(m, 16); s, n = divmod(r, 4)
        b = WF + 4 * (m % 8); off = SLOT3[g % 4] - 98304 + s * 4096
        p(f'ds_read_b64_tr_b16 {vr(b,2)}, v{v3W+n} offset:{off}')
        p(f'ds_read_b64_tr_b16 {vr(b+2,2)}, v{v3W+n} offset:{off+2048}')
    def phase3(grp):
        vq = VQ(grp)
        for m in range(PDW): wread3(m)
        for g in range(NCH):
            assert not any(it[2] == f'AL{g}' for it, t in vq.q), ('AL', g)
            for r in range(16):
                m = g * 16 + r; s, n = divmod(r, 4)
                a = vr(ACC + 16 * n, 16); wf = vr(WF + 4 * (m % 8), 4); xf = ar(16 * (g % 4) + 4 * s, 4)
                cin = a if not (g == 0 and s == 0) else '0'
                p(f'v_mfma_f32_32x32x16_bf16 {a}, {wf}, {xf}, {cin}')
                if r == 16 - PDW - 1 and g < NCH - 1:
                    if g + 1 >= 3: p.waittok(f'X{g+1}')
                    p('s_barrier')
                if m + PDW < NCH * 16: wread3(m + PDW)
                if r == 16 - PDW and g + 3 < NCH: vq.add(itemsW3(g + 3, sT3), front=True)
                if r == 15 and g + 3 < NCH: vq.add(itemsA(g + 3))
                vq.slot(m)
            if g == 9:
                p(f's_cmp_ge_u32 s{sS}, 6'); p('s_cbranch_scc1 K3_epi')
        p('s_branch K3_epi')
    p(f's_cmp_ge_u32 s{sWave}, 4'); p('s_cbranch_scc1 K3_B')
    phase3('A')
    p.label('K3_B')
    phase3('B')
    p.label('K3_epi')
    p(f's_lshl_b32 s38, s{sS}, 6'); p(f's_add_u32 s38, s38, s{sR3}'); p('s_lshl_b32 s38, s38, 4'); p(f's_lshl_b32 s39, s{sCT}, 2'); p('s_add_u32 s38, s38, s39'); p('s_lshl_b32 s38, s38, 11')
    p(f's_add_u32 s38, s38, {WS_PT}')
    for n in range(4):
        a = ACC + 16 * n
        for j in range(8): p(f'v_cvt_pk_bf16_f32 v{a+j}, v{a+2*j}, v{a+2*j+1}')
        if n == 2: p('s_add_u32 s38, s38, 4096')
        for half in range(2): p(f'buffer_store_dwordx4 {vr(a+4*half,4)}, v{vL16}, s[{WS}:{WS+3}], s38 offen offset:{(n%2)*2048+half*1024}{SC1}')
    st(p, 8, 100); stamp_real(p, 42, sWave, 100)
    SX4, SO4 = SA, SB
    p(f's_mov_b32 s53, s{sS}'); p(f's_mov_b32 s54, s{sRB}'); p(f's_mov_b32 s55, s{sCT}')
    srd(p, SX4, 4, 0, 2048*512*2)
    srd(p, 72, 24, 0, 2048*512*2)
    p('s_lshl_b32 s38, s54, 3'); p('s_add_u32 s40, s38, s53')
    p('s_lshl_b32 s38, s55, 2'); p(f's_and_b32 s39, s{sWave}, 3'); p('s_add_u32 s41, s38, s39')
    p(f's_lshr_b32 s42, s{sWave}, 2')
    p('s_lshl_b32 s38, s40, 15'); p('s_lshl_b32 s39, s41, 6'); p('s_add_u32 s43, s38, s39'); p('s_lshl_b32 s39, s42, 5'); p('s_add_u32 s43, s43, s39')
    p(f'v_and_b32 v3, 31, v{vL}'); p('v_lshlrev_b32 v3, 10, v3'); p(f'v_lshrrev_b32 v4, 5, v{vL}'); p('v_lshlrev_b32 v4, 3, v4'); p('v_add_u32 v3, v3, v4')
    for g in range(2): p(f'buffer_load_dwordx2 {vr(8+2*g,2)}, v3, s[{SX4}:{SX4+3}], s43 offen offset:{g*16}')
    p('s_waitcnt vmcnt(0)'); p('s_barrier')
    st(p, 11, 100)
    def s4():
        p('s_lshl_b32 s38, s54, 2'); p('s_add_u32 s38, s38, s55'); p('s_lshl_b32 s44, s38, 7'); p(f's_add_u32 s44, s44, {CNT_S4}')
        sy.arrive(WS, 's44', 16, 17)
        sy.spin(WS, 's44', 16, 17, 8)
    only('w0', s4)
    p('s_barrier')
    st(p, 12, 100)
    p('s_lshl_b32 s38, s40, 4'); p('s_add_u32 s38, s38, s41'); p('s_lshl_b32 s38, s38, 11'); p('s_lshl_b32 s39, s42, 10'); p('s_add_u32 s38, s38, s39'); p(f's_add_u32 s38, s38, {WS_PT}')
    for s in range(8):
        p(f'buffer_load_dwordx4 {vr(16+4*s,4)}, v{vL16}, s[{WS}:{WS+3}], s38 offen sc1')
        if s < 7: p(f's_add_u32 s38, s38, {64*16*2048}')
    A = 64
    for j in range(4):
        p(f'v_lshlrev_b32 v{A+2*j}, 16, v{8+j}'); p(f'v_and_b32 v{A+2*j+1}, 0xffff0000, v{8+j}')
    for s in range(8):
        for j in range(4):
            src = 16 + 4 * s + j
            p(f'v_lshlrev_b32 v5, 16, v{src}'); p(f'v_and_b32 v6, 0xffff0000, v{src}')
            p(f'v_add_f32 v{A+2*j}, v{A+2*j}, v5'); p(f'v_add_f32 v{A+2*j+1}, v{A+2*j+1}, v6')
    for j in range(4): p(f'v_cvt_pk_bf16_f32 v{8+j}, v{A+2*j}, v{A+2*j+1}')
    for g in range(2): p(f'buffer_store_dwordx2 {vr(8+2*g,2)}, v3, s[72:75], s43 offen offset:{g*16}')
    st(p, 9, 100); stamp_real(p, 10, sWave, 100)
    p.label('K_end'); p('s_endpgm')
    p.label('K_code_end')
    for i in p.ins:
        if 'sc1_ATOM' in i.text: i.text = i.text.replace('sc1_ATOM', 'sc1')
    p.finalize()
    return p

if __name__ == '__main__':
    out = [a for a in sys.argv[1:] if not a.startswith('-')][0]
    p = build()
    hdr = open('parallel_sum__compressed_kv_cla__swiglu_ffn__prompt.s.ref').read().split('; Override')[0]
    if '-l' in sys.argv: s = hdr + f'; @launch kernel={NAME} grid=(256,1,1) block=(512,1,1) lds=163840\n'
    else: s = hdr + f'; @launch grid=(256,1,1) block=(512,1,1) lds=163840\n'
    s += '.amdgcn_target "amdgcn-amd-amdhsa--gfx950"\n' + kernel_head(NAME) + p.text() + kernel_desc(NAME, 128, 128)
    open(out, 'w').write(s)
    print('written', out, len(s), 'instrs', len(p.ins))
```

```python
from asm import *
from common import *

S = [16, 32]
NEGM = 48
P = [64, 72]
E = 80
LS = 88
LRUN = 89
VK, VKN, VV = 90, 91, 92
VL16 = 93
VT = 94
T0, T1, T2, T3 = 95, 96, 97, 98
VDMA = 99
AO, AQ, AF = 0, 64, 96
import os
PD = int(os.environ.get('PD', 6))
GRP = int(os.environ.get('GRP', 1))
EXPT = os.environ.get('EXPT', '')
NE = int(os.environ.get('NE', 3))
UNR = int(os.environ.get('UNR', 2))
PD0 = 5

KSLOT, VSLOT = 16384, 16384
LDS_K, LDS_V = 0, 49152
NK, NV = 3, 4

sKsl, sVsl = 40, 41
sIt = 42
sKdma, sVdma = 43, 44
sKdl, sVdl = 45, 46
sThr = 47
sSRDK, sSRDV = 28, 28
sTmp = 56
sMaskU = 57

def frag(n): return ar(AF + 4 * (n % 8), 4)

def frag_read(p, gslot):
    n = gslot
    if n >= 32:
        s = n - 32
        assert s < 8
        p(f'ds_read_b128 {frag(n)}, v{VK} offset:{s*1024}')
        return
    per, s = n // 16, n % 16
    if s < 8:
        p(f'ds_read_b128 {frag(n)}, v{VK} offset:{(per*8+s)*1024}')
    else:
        p(f'ds_read_b128 {frag(n)}, v{VV} offset:{(per*8+s-8)*1024}')

def dma_ops(which):
    o = []
    if 'nodma' in EXPT: return [[], [], [], [], []]
    if which == 'K':
        o.append([f's_mov_b32 m0, s{sKdl}'])
        for j in range(4): o.append([(f'buffer_load_dwordx4 v{VDMA}, s[{sSRDK}:{sSRDK+3}], s{sKdma} offen offset:{j*1024} sc1 lds', 'K')])
    else:
        o.append([f's_mov_b32 m0, s{sVdl}'])
        for j in range(4): o.append([(f'buffer_load_dwordx4 v{VDMA}, s[{sSRDV}:{sSRDV+3}], s{sVdma} offen offset:{j*1024} sc1 lds', 'V')])
    return o

def period(p, par, qk=True, sm=True, pv=True, masked=False, gbase=0, reads=True, rare=None, next_reads=True, hooks=None, tail=None, early=True):
    sn, so = S[par], S[1 - par]
    pn, po = P[1 - par], P[par]
    fill = [[] for _ in range(16)]
    if sm:
        for r in range(NE, 16): fill[r - NE].append(f'v_exp_f32 v{E + r % 8}, v{so + r}')
        for r in range(1, 16):
            if r == 1: fill[0].append(f'v_add_f32 v{LS}, v{E}, v{E+1}')
            else: fill[max(r - NE + 1, 0)].append(f'v_add_f32 v{LS}, v{LS}, v{E + r % 8}')
        for k in range(8): fill[max(2 * k + 2 - NE, 0)].append(f'v_cvt_pk_bf16_f32 v{pn + k}, v{E + (2*k) % 8}, v{E + (2*k+1) % 8}')
        fill[17 - NE].append(f'v_cmp_lt_f32 vcc, s{sThr}, v{LS}')
    if early:
        for q in range(NE): fill[16 - NE + q].insert(0, f'v_exp_f32 v{E+q}, v{sn+q}')
    hooks = hooks or {}
    def emit(lst):
        for x in lst:
            if isinstance(x, tuple): p(x[0], tokdef=x[1])
            else: p(x)
    for s in range(16):
        g = gbase + s
        if masked and qk and s == 0:
            mask_init(p, par, sMaskU)
        xu = [frag(g + j) for j in range(1, GRP)] if g % GRP == 0 else None
        if s < 8:
            if qk:
                c = vr(sn, 16) if (s > 0 or masked) else vr(NEGM, 16)
                p(f'v_mfma_f32_32x32x16_bf16 {vr(sn,16)}, {frag(g)}, {ar(AQ+4*s,4)}, {c}', xuse=xu)
        else:
            if pv:
                ks, dt = (s - 8) // 4, (s - 8) % 4
                p(f'v_mfma_f32_32x32x16_bf16 {ar(AO+16*dt,16)}, {frag(g)}, {vr(po+4*ks,4)}, {ar(AO+16*dt,16)}', xuse=xu)
        emit(hooks.get(g, {}).get('pre', []))
        if reads and g % GRP == 0 and 'noread' not in EXPT:
            for j in range(GRP):
                ng = g + PD + j
                if ng < 32:
                    ok = reads(ng // 16, ng % 16) if callable(reads) else True
                else:
                    ok = next_reads
                if ok: frag_read(p, ng)
        for f in fill[s]:
            if 'noadd' in EXPT and f.startswith('v_add'): continue
            if 'noexp' in EXPT and f.startswith('v_exp'): continue
            if 'nocvt' in EXPT and f.startswith('v_cvt'): continue
            p(f)
        emit(hooks.get(g, {}).get('post', []))
    if sm:
        if rare: p(f's_cbranch_vccnz {rare}')
        if rare: p.label(rare + '_ret')
        p(f'v_add_f32 v{LRUN}, v{LRUN}, v{LS}')

BIG = 2.0 ** 90

def mask_init2(p, sb):
    for r in range(16):
        c = (r >> 2) * 8 + (r & 3)
        if c == 0: p(f'v_min_f32 v{S[sb]+r}, v{VT}, v{NEGM+r}')
        else:
            p(f'v_add_f32 v{S[sb]+r}, 0x{f2u(-c*BIG):08x}, v{VT}')
            p(f'v_min_f32 v{S[sb]+r}, v{S[sb]+r}, v{NEGM+r}')
    p(f'v_add_f32 v{VT}, 0x{f2u(-32*BIG):08x}, v{VT}')
def mask_init(p, sb, _u): mask_init2(p, sb)

def rowmax(p, sb, dst):
    b = S[sb]
    p(f'v_max3_f32 v{dst}, v{b}, v{b+1}, v{b+2}')
    for r in range(3, 15, 2): p(f'v_max3_f32 v{dst}, v{dst}, v{b+r}, v{b+r+1}')
    p(f'v_max_f32 v{dst}, v{dst}, v{b+15}')
    p(f'v_mov_b32 v{T3}, v{dst}')
    p(f'v_permlane32_swap_b32 v{dst}, v{T3}')
    p(f'v_max_f32 v{dst}, v{dst}, v{T3}')

def sm_plain(p, sb, pb):
    so = S[sb]; pn = P[pb]
    for r in range(0, 16, 2):
        p(f'v_exp_f32 v{E}, v{so+r}')
        p(f'v_exp_f32 v{E+1}, v{so+r+1}')
        if r == 0: p(f'v_add_f32 v{LS}, v{E}, v{E+1}')
        else:
            p(f'v_add_f32 v{LS}, v{LS}, v{E}')
            p(f'v_add_f32 v{LS}, v{LS}, v{E+1}')
        p(f'v_cvt_pk_bf16_f32 v{pn + r//2}, v{E}, v{E+1}')

def rare_path(p, label, par):
    p.label(label)
    rowmax(p, 1 - par, T1)
    p(f'v_max_f32 v{T1}, 0, v{T1}')
    p(f'v_exp_f32 v{T2}, -v{T1}')
    for r in range(16):
        p(f'v_sub_f32 v{S[1-par]+r}, v{S[1-par]+r}, v{T1}')
        p(f'v_sub_f32 v{S[par]+r}, v{S[par]+r}, v{T1}')
        p(f'v_sub_f32 v{NEGM+r}, v{NEGM+r}, v{T1}')
    p(f'v_mul_f32 v{LRUN}, v{LRUN}, v{T2}')
    for r in range(64):
        p(f'v_accvgpr_read_b32 v{E + r % 4}, a{AO+r}')
        p(f'v_mul_f32 v{E + r % 4}, v{E + r % 4}, v{T2}')
        p(f'v_accvgpr_write_b32 a{AO+r}, v{E + r % 4}')
    sm_plain(p, 1 - par, 1 - par)
    for q in range(NE): p(f'v_exp_f32 v{E+q}, v{S[par]+q}')
    p(f's_branch {label}_ret')

def _unused_iter_head(p, loader, wait):
    if loader: p(f's_waitcnt vmcnt({wait})')
    p('s_barrier')

def adv_k():
    return [f's_add_u32 s{sKsl}, s{sKsl}, {KSLOT}', f's_cmp_eq_u32 s{sKsl}, {NK*KSLOT}', f's_cselect_b32 s{sKsl}, 0, s{sKsl}',
            f'v_add_u32 v{VK}, s{sKsl}, v{VL16}']
def adv_v():
    return [f's_add_u32 s{sVsl}, s{sVsl}, {VSLOT}', f's_cmp_eq_u32 s{sVsl}, {LDS_V + NV*VSLOT}', f's_cselect_b32 s{sVsl}, {LDS_V}, s{sVsl}',
            f'v_add_u32 v{VV}, s{sVsl}, v{VL16}']
def dma_adv():
    return [f's_add_u32 s{sKt}, s{sKt}, 1',
    f's_add_u32 s{sKbase}, s{sKbase}, 16384',
    f's_cmp_lt_u32 s{sKt}, s{sNT}',
    f's_cselect_b32 s{sKdma}, s{sKbase}, s{sOOB}',
    f's_add_u32 s{sVbase}, s{sVbase}, 16384',
    f's_cmp_le_u32 s{sKt}, s{sNT}',
    f's_cselect_b32 s{sVdma}, s{sVbase}, s{sOOB}',
    f's_add_u32 s{sKdl}, s{sKdl}, {KSLOT}',
    f's_cmp_ge_u32 s{sKdl}, {NK*KSLOT}',
    f's_cselect_b32 s{sTmp}, {NK*KSLOT}, 0',
    f's_sub_u32 s{sKdl}, s{sKdl}, s{sTmp}',
    f's_add_u32 s{sVdl}, s{sVdl}, {VSLOT}',
    f's_cmp_ge_u32 s{sVdl}, {LDS_V + NV*VSLOT}',
    f's_cselect_b32 s{sTmp}, {NV*VSLOT}, 0',
    f's_sub_u32 s{sVdl}, s{sVdl}, s{sTmp}']
def dma_advance(p):
    for x in dma_adv(): p(x)
sKt, sNT, sKbase, sVbase, sOOB = 58, 59, 60, 61, 62
sNTw, sR32, sCtxOff = 63, 64, 66
sWave, sH, sI = 3, 33 + 3, 37
STSC = ' sc1'
def _stsc():
    import attn
    return attn.STSC
sSRDC = 28

def dma_group(p):
    for grp in dma_ops('K') + dma_ops('V'):
        for x in grp:
            if isinstance(x, tuple): p(x[0])
            else: p(x)

def iteration(p, loader, masked=False, final=False, rare=None, loop=None, inv=False):
    BS = 32 - PD
    hooks = {g: {'pre': [], 'post': []} for g in range(32)}
    if loader:
        d = dma_ops('K') + dma_ops('V')
        sl = [1, 3, 5, 7, 9, 11, 13, 15, 17, 19]
        for g, grp in zip(sl, d): hooks[g]['post'] += grp
        adv = dma_adv()
        for n, x in enumerate(adv): hooks[20 + n // 3]['post'].append(x)
    kadv = adv_k(); vadv = adv_v()
    hooks[24 - PD + 1]['post'] += kadv[:3]; hooks[24 - PD + 2]['post'] += kadv[3:]
    hooks[BS]['pre'] += ([f's_waitcnt vmcnt(8)'] if loader else []) + ['s_barrier']
    hooks[BS + 1]['post'] += vadv[:3]; hooks[BS + 2]['post'] += vadv[3:]
    if loop:
        hooks[30]['post'] += [f's_sub_u32 s{sIt}, s{sIt}, 1']
        hooks[31]['post'] += [f's_cmp_lg_u32 s{sIt}, 0']
    if final:
        rd = lambda per, s: s >= 8
        period(p, 0, qk=False, sm=True, pv=True, gbase=0, reads=rd, rare=rare and rare + 'a', hooks=hooks, early=False)
        period(p, 1, qk=False, sm=False, pv=True, gbase=16, reads=rd, next_reads=False, hooks=hooks, early=False)
    else:
        period(p, 0, masked=masked, gbase=0, rare=rare and rare + 'a', hooks=hooks)
        period(p, 1, masked=masked, gbase=16, rare=rare and rare + 'b', hooks=hooks)
    if loop: p(f's_cbranch_scc{0 if inv else 1} {loop}')

def attention(p, loader, pre, tokwait=False, pre_tok=None, post_init=None):
    L = pre
    for r in range(64): p(f'v_accvgpr_write_b32 a{AO+r}, 0')
    for r in range(16): p(f'v_mov_b32 v{NEGM+r}, 0')
    if loader:
        if tokwait: p.waittok('K0')
        else: p('s_waitcnt vmcnt(16)')
    if pre_tok: p.waittok(pre_tok)
    p('s_barrier')
    if post_init: post_init()
    mask_init2(p, 0)
    for s in range(8): p(f'ds_read_b128 {frag(s)}, v{VK} offset:{s*1024}')
    for s in range(8): p(f'v_mfma_f32_32x32x16_bf16 {vr(S[0],16)}, {frag(s)}, {ar(AQ+4*s,4)}, {vr(S[0],16)}')
    for s in range(8): p(f'ds_read_b128 {frag(s)}, v{VK} offset:{(8+s)*1024}')
    rowmax(p, 0, T1)
    for r in range(16):
        p(f'v_sub_f32 v{S[0]+r}, v{S[0]+r}, v{T1}')
        p(f'v_sub_f32 v{NEGM+r}, 0, v{T1}')
    mask_init2(p, 1)
    for s in range(8): p(f'v_mfma_f32_32x32x16_bf16 {vr(S[1],16)}, {frag(s)}, {ar(AQ+4*s,4)}, {vr(S[1],16)}')
    for x in adv_k(): p(x)
    if loader:
        if tokwait: p.waittok('K1', 'V0')
        else: p('s_waitcnt vmcnt(8)')
    p('s_barrier')
    for s in range(PD): p(f'ds_read_b128 {frag(s)}, v{VK} offset:{s*1024}')
    sm_plain(p, 0, 0)
    p(f'v_mov_b32 v{LRUN}, v{LS}')
    for q in range(NE): p(f'v_exp_f32 v{E+q}, v{S[1]+q}')
    p(f's_sub_i32 s{sIt}, s{sNTw}, 3')
    p(f's_cmp_le_i32 s{sIt}, 0')
    p(f's_cbranch_scc1 {L}_masked_setup')
    AL = os.environ.get('AL', '')
    if AL:
        p('.p2align ' + AL[0])
        if 'n' in AL: p('s_nop 0')
    p.label(f'{L}_loop')
    if UNR == 2:
        iteration(p, loader, rare=f'{L}_r0', loop=f'{L}_masked_setup', inv=True)
        iteration(p, loader, rare=f'{L}_r3', loop=f'{L}_loop')
    else:
        iteration(p, loader, rare=f'{L}_r0', loop=f'{L}_loop')
    p.label(f'{L}_masked_setup')
    p(f's_sub_i32 s{sTmp}, s{sNTw}, 3')
    p(f's_max_i32 s{sTmp}, s{sTmp}, 0')
    p(f's_sub_i32 s{sIt}, s{sNTw}, s{sTmp}')
    p(f's_sub_i32 s{sIt}, s{sIt}, 1')
    p(f's_lshl_b32 s{sTmp}, s{sTmp}, 6')
    p(f'v_cvt_f32_u32 v{T0}, s{sTmp}')
    p(f'v_mul_f32 v{T0}, 0x{f2u(BIG):08x}, v{T0}')
    p(f'v_sub_f32 v{VT}, v{VT}, v{T0}')
    p.label(f'{L}_mloop')
    iteration(p, loader, masked=True, rare=f'{L}_r1', loop=f'{L}_mloop')
    iteration(p, loader, final=True, rare=f'{L}_r2')

def epilogue(p, dual):
    p(f'v_mov_b32 v{T1}, v{LRUN}')
    p(f'v_mov_b32 v{T2}, v{LRUN}')
    p(f'v_permlane32_swap_b32 v{T1}, v{T2}')
    p(f'v_add_f32 v{T1}, v{T1}, v{T2}')
    p(f'v_rcp_f32 v{T1}, v{T1}')
    for dt in range(4):
        for ks in range(2):
            b = 48; o = 16 + 4 * (dt * 2 + ks)
            for j in range(8): p(f'v_accvgpr_read_b32 v{b+j}, a{AO+16*dt+8*ks+j}')
            for j in range(8): p(f'v_mul_f32 v{b+j}, v{b+j}, v{T1}')
            for j in range(4): p(f'v_cvt_pk_bf16_f32 v{o+j}, v{b+2*j}, v{b+2*j+1}')
    def st(fl):
        p(f's_add_u32 s{sTmp}, s{sCtxOff}, 4096')
        for f in range(8):
            so = sCtxOff if f < 4 else sTmp
            p(f'buffer_store_dwordx4 {vr(16+4*f,4)}, v{VL16}, s[{sSRDC}:{sSRDC+3}], s{so} offen offset:{(f%4)*1024}{fl}')
    dual(st)

def rare_paths(p, L):
    for nm in ('r0', 'r1') + (('r3',) if UNR == 2 else ()):
        rare_path(p, f'{L}_{nm}a', 0)
        rare_path(p, f'{L}_{nm}b', 1)
    rare_path(p, f'{L}_r2a', 0)
```

```python
import sys, os
sys.path.insert(0, 'gen')
import common
common.STAMPS = '-s' in sys.argv
from common import *
from attn import *
import attn
NAME = 'parallel_sum__compressed_kv_cla__swiglu_ffn__prompt_kernel'
QSCALE = 128 ** -0.5 * 1.4426950408889634
WS = 28; DBG = 32
SA, SB, SC, SD, SE, SF = 48, 52, 68, 72, 76, 80
SC1 = '' if 'nosc1' in os.environ.get('FX', '') else ' sc1'
NOINV = 'noinv' in os.environ.get('FX', '')
attn.STSC = SC1
SPIN_LIMIT = 1 << 18
CNT_S2, CNT_S3, CNT_S4, CNT_S3H = WS_CNT, WS_CNT + 32 * 128, WS_CNT + 96 * 128, WS_CNT + 128 * 128
sFast = 96
LD1 = ' sc1'
PF = 'nopf' not in os.environ.get('FX', '')
FORCE = os.environ.get('FORCE', '')
FXE = os.environ.get('FX', '')
vAT, vONE, vPOLL, vZ = 124, 125, 126, 127

def st(p, idx, vt):
    stamp(p, idx, sWave, vt)

class Sync:
    def __init__(self, p): self.p = p; self.n = 0; self.tail = []
    def arrive(self, srdn, soff, t0, t1, val='1'):
        p = self.p
        p(f'v_mbcnt_lo_u32_b32 v{t0}, -1, 0'); p(f'v_mbcnt_hi_u32_b32 v{t0}, -1, v{t0}')
        p(f'v_cmp_eq_u32 vcc, 0, v{t0}'); p(f'v_mov_b32 v{t1}, 0x7fffff00')
        p(f'v_cndmask_b32 v{t0}, v{t1}, v{t0}, vcc')
        p(f'v_mov_b32 v{t1}, {val}')
        p(f'buffer_atomic_add v{t1}, v{t0}, s[{srdn}:{srdn+3}], {soff} offen sc1_ATOM', tokdef='ATOM')
    def poll_issue(self, srdn, soff, vp, vz):
        p = self.p
        p(f'v_mov_b32 v{vz}, 0')
        p(f'buffer_load_dword v{vp}, v{vz}, s[{srdn}:{srdn+3}], {soff} offen sc1')
    def poll_check(self, srdn, soff, vp, vz, target, mask=None):
        p = self.p; self.n += 1; L = f'SY{self.n}'
        p(f'v_readfirstlane_b32 s38, v{vp}')
        if mask: p(f's_and_b32 s39, s38, {mask}'); p(f's_cmp_ge_u32 s39, {target}')
        else: p(f's_cmp_ge_u32 s38, {target}')
        p(f's_cbranch_scc1 {L}_ok')
        self.spin(srdn, soff, vp, vz, target, mask)
        p.label(f'{L}_ok')
    def spin(self, srdn, soff, vp, vz, target, mask=None):
        p = self.p; self.n += 1; L = f'SP{self.n}'
        p('s_mov_b32 s95, 0'); p(f'v_mov_b32 v{vz}, 0')
        p.label(L)
        p(f'buffer_load_dword v{vp}, v{vz}, s[{srdn}:{srdn+3}], {soff} offen sc1')
        p(f'v_readfirstlane_b32 s38, v{vp}')
        if mask: p(f's_and_b32 s39, s38, {mask}'); p(f's_cmp_ge_u32 s39, {target}')
        else: p(f's_cmp_ge_u32 s38, {target}')
        p(f's_cbranch_scc1 {L}_d')
        p('s_add_u32 s95, s95, 1'); p(f's_cmp_lt_u32 s95, {SPIN_LIMIT}'); p(f's_cbranch_scc1 {L}')
        p.label(f'{L}_d')

def build():
    p = Prog(); sy = Sync(p)
    lab = [0]
    def only(cond, fn):
        lab[0] += 1; L = f'ON{lab[0]}'
        if cond == 'w0': p(f's_cmp_lg_u32 s{sWave}, 0')
        elif cond == 'w3': p(f's_cmp_lg_u32 s{sWave}, 3')
        else: p(f's_cmp_ge_u32 s{sWave}, 4')
        p(f's_cbranch_scc1 {L}'); fn(); p.label(L)
    vL, vL16 = 1, 2
    def code_pf(lab0, lab1, va, vd, n):
        if 'nocodepf' in FXE: return
        for k in range(n):
            p(f's_mov_b32 s38, {lab0}-{NAME}+{k*8192}'); p(f'v_lshl_add_u32 v{va}, v{vL}, 7, s38')
            p(f's_mov_b32 s38, {lab1}-{NAME}-128'); p(f'v_min_u32 v{va}, s38, v{va}')
            p(f'v_mov_b32 v{va+1}, s101'); p(f'v_add_co_u32 v{va}, vcc, s100, v{va}'); p(f'v_addc_co_u32 v{va+1}, vcc, 0, v{va+1}, vcc')
            p(f'global_load_dword v{vd}, v[{va}:{va+1}], off')
    vW, vWD = 4, 8
    t0, t1, t2, t3 = 18, 19, 20, 21
    WF, ACC = 32, 64
    sWoff, sCoff, sCl, sOut, sT = 65, 67, 57, 56, 39
    sT = 47
    p('s_cmp_ge_u32 s2, 256'); p('s_cbranch_scc1 K_end')
    if 'nocodepf' not in FXE:
        p('s_getpc_b64 s[100:101]')
        p.label('K_pc')
        p(f's_sub_u32 s100, s100, K_pc-{NAME}'); p('s_subb_u32 s101, s101, 0')
        p('s_lshr_b32 s38, s2, 3'); p('s_lshl_b32 s38, s38, 5'); p('v_and_b32 v4, 31, v0'); p('v_add_u32 v4, s38, v4'); p('v_lshlrev_b32 v4, 7, v4')
        p(f's_mov_b32 s38, K_code_end-{NAME}-128'); p('v_min_u32 v4, s38, v4')
        p('v_and_b32 v6, 63, v0'); p('v_lshlrev_b32 v6, 7, v6'); p('v_lshrrev_b32 v7, 6, v0'); p('v_mul_u32_u24 v7, 0x2000, v7'); p('v_add_u32 v6, v6, v7'); p('v_subrev_u32 v6, 0x2000, v6')
        p('v_cmp_gt_u32 vcc, 192, v0'); p('v_cndmask_b32 v6, 0, v6, vcc')
        p('v_cmp_gt_u32 vcc, 64, v0'); p('v_cndmask_b32 v4, v6, v4, vcc')
        p('v_mov_b32 v5, s101'); p('v_add_co_u32 v4, vcc, s100, v4'); p('v_addc_co_u32 v5, vcc, 0, v5, vcc')
        p('global_load_dword v3, v[4:5], off')
    p('s_load_dwordx16 s[4:19], s[0:1], 0'); p('s_load_dwordx8 s[20:27], s[0:1], 64'); p('s_load_dwordx2 s[92:93], s[0:1], 96')
    stamp_init(p)
    p(f'v_lshrrev_b32 v{t0}, 6, v0'); p(f'v_readfirstlane_b32 s{sWave}, v{t0}')
    p(f'v_and_b32 v{vL}, 63, v0'); p(f'v_lshlrev_b32 v{vL16}, 4, v{vL}')
    p('s_and_b32 s38, s2, 7'); p('s_lshl_b32 s38, s38, 2'); p('s_lshr_b32 s39, s2, 3'); p('s_and_b32 s39, s39, 3')
    p(f's_add_u32 s{sH}, s38, s39'); p(f's_lshr_b32 s{sI}, s2, 5')
    wtr_addr_setup(p, vW, vL, t0, t1, False)
    wdma_addr_setup(p, vWD, vL, t0, t1, 8192)
    vCD, vCR, vW1 = 10, 12, 14
    p(f'v_bfe_u32 v{t0}, v{vL}, 4, 2'); p(f'v_and_b32 v{t1}, 3, v{vL}'); p(f'v_xor_b32 v{t0}, v{t0}, v{t1}'); p(f'v_lshlrev_b32 v{t0}, 4, v{t0}')
    p(f'v_lshrrev_b32 v{t1}, 2, v{vL}'); p(f'v_lshl_add_u32 v{vCD}, v{t1}, 10, v{t0}'); p(f'v_add_u32 v{vCD+1}, {16*1024-1024}, v{vCD}')
    SLOT1 = lambda g: ((g + 4) % 5) * 32768
    p(f's_lshl_b32 s{sCl}, s{sWave}, 11')
    p(f'v_and_b32 v{t0}, 31, v{vL}'); p(f'v_bfe_u32 v{t1}, v{vL}, 2, 2'); p(f'v_lshrrev_b32 v{t2}, 5, v{vL}')
    p(f's_add_u32 s38, s{sCl}, {SLOT1(0)}')
    for q in range(2):
        p(f'v_add_u32 v{t3}, {2*q}, v{t2}'); p(f'v_xor_b32 v{t3}, v{t3}, v{t1}'); p(f'v_lshlrev_b32 v{t3}, 4, v{t3}')
        p(f'v_lshl_add_u32 v{t3}, v{t0}, 6, v{t3}'); p(f'v_add_u32 v{vCR+q}, s38, v{t3}')
    for n in range(4): p(f'v_add_u32 v{vW1+n}, {SLOT1(0) + 16384}, v{vW+n}')
    p('s_waitcnt lgkmcnt(0)')
    srd(p, WS, 92, 0, WS_SIZE); srd(p, DBG, 26, 0, 256)
    if common.STAMPS: srd(p, 84, 92, WS_TS, 1 << 20)
    st(p, 44, 29)
    SX, SCK, SUK, SUV, SG, SU = SA, SB, SC, SD, SE, SF
    srd(p, SX, 4, 0, 2048*512*2); srd(p, SCK, 6, 0, 2048*512*2); srd(p, SUK, 10, 0, 512*4096*2); srd(p, SUV, 12, 0, 512*4096*2)
    srd(p, SG, 18, 0, 512*1376*2); srd(p, SU, 20, 0, 512*1376*2)
    def emitPF1():
        p(f'v_bfe_u32 v27, v{vL}, 4, 1'); p('v_lshlrev_b32 v27, 13, v27'); p(f'v_and_b32 v26, 15, v{vL}'); p('v_lshlrev_b32 v26, 6, v26'); p('v_add_u32 v27, v27, v26')
        p(f'v_mov_b32 v26, 0x7fffff00'); p(f'v_cmp_gt_u32 vcc, 32, v{vL}'); p('v_cndmask_b32 v27, v26, v27, vcc')
        p('s_lshr_b32 s40, s2, 3')
        p('s_lshl_b32 s38, s40, 4'); p(f's_lshl_b32 s39, s{sWave}, 1'); p('s_add_u32 s38, s38, s39'); p('s_lshl_b32 s38, s38, 13')
        p('s_and_b32 s39, s2, 7'); p('s_lshl_b32 s39, s39, 10'); p('s_add_u32 s41, s38, s39')
        p(f'buffer_load_dword v3, v27, s[{SUK}:{SUK+3}], s41 offen'); p(f'buffer_load_dword v3, v27, s[{SUV}:{SUV+3}], s41 offen')
        p(f'v_lshlrev_b32 v26, 10, v{vL}'); p('s_lshl_b32 s38, s40, 16'); p(f's_lshl_b32 s39, s{sWave}, 6'); p('s_add_u32 s38, s38, s39')
        p(f'buffer_load_dword v3, v26, s[{SCK}:{SCK+3}], s38 offen'); p(f'buffer_load_dword v3, v26, s[{SCK}:{SCK+3}], s38 offen offset:512')
    def emitPFT(half):
        if half == 0 or 'T2only' in FXE:
            sh, nc, nw = (7, 32, 8) if 'S128' in FXE else (6, 64, 16)
            p(f'v_lshrrev_b32 v26, 3, v{vL}'); p(f'v_lshlrev_b32 v26, {sh}, v26'); p(f'v_and_b32 v27, 7, v{vL}'); p('v_lshl_add_u32 v26, v27, 10, v26')
            p(f'v_lshlrev_b32 v27, {sh}, v{vL}'); p('v_mov_b32 v18, 0x7fffff00'); p(f'v_cmp_gt_u32 vcc, {nw}, v{vL}'); p('v_cndmask_b32 v27, v18, v27, vcc')
            if nc < 64: p(f'v_cmp_gt_u32 vcc, {nc}, v{vL}'); p('v_cndmask_b32 v26, v18, v26, vcc')
        p('s_lshr_b32 s40, s2, 3')
        p(f's_lshl_b32 s39, s{sWave}, 5'); p('s_add_u32 s39, s39, s40'); p(f's_add_u32 s39, s39, {256*half}'); p('s_lshl_b32 s39, s39, 13')
        p('s_and_b32 s41, s2, 7'); p('s_lshl_b32 s41, s41, 10'); p('s_add_u32 s41, s41, s39')
        p('s_lshl_b32 s38, s40, 16'); p(f's_lshl_b32 s39, s{sWave}, 13'); p('s_add_u32 s38, s38, s39')
        p(f'buffer_load_dword v3, v26, s[{SCK}:{SCK+3}], s38 offen offset:{512*half}')
        p(f'buffer_load_dword v3, v27, s[{SUK}:{SUK+3}], s41 offen'); p(f'buffer_load_dword v3, v27, s[{SUV}:{SUV+3}], s41 offen')
    if PF and 'PF1top' in FXE: emitPF1()
    if 'PF0' in FXE:
        p(f'v_lshlrev_b32 v26, 7, v{vL}')
        p(f's_cmp_eq_u32 s{sWave}, 0'); p('s_cbranch_scc0 PZ1'); p('s_lshl_b32 s38, s2, 13'); p(f'buffer_load_dword v3, v26, s[{SCK}:{SCK+3}], s38 offen'); p.label('PZ1')
        p(f's_lshl_b32 s38, s2, 14'); p(f's_and_b32 s39, s{sWave}, 1'); p('s_lshl_b32 s39, s39, 13'); p('s_add_u32 s38, s38, s39'); p(f's_lshr_b32 s39, s{sWave}, 1')
        p('s_cmp_eq_u32 s39, 1'); p('s_cbranch_scc0 PZ2'); p(f'buffer_load_dword v3, v26, s[{SUK}:{SUK+3}], s38 offen'); p.label('PZ2')
        p('s_cmp_eq_u32 s39, 2'); p('s_cbranch_scc0 PZ3'); p(f'buffer_load_dword v3, v26, s[{SUV}:{SUV+3}], s38 offen'); p.label('PZ3')
    p(f's_lshl_b32 s38, s{sH}, 8'); p(f's_lshl_b32 s39, s{sWave}, 16'); p(f's_add_u32 s{sWoff}, s38, s39')
    p(f's_lshl_b32 s38, s{sI}, 18'); p(f's_lshl_b32 s39, s{sWave}, 15'); p(f's_add_u32 s{sCoff}, s38, s39')
    p(f's_lshl_b32 s{sT}, s{sWave}, 11')
    sW1 = 99; sGUd = 58
    p(f's_lshl_b32 s38, s{sH}, 8'); p(f's_lshl_b32 s39, s{sWave}, 15'); p(f's_add_u32 s{sW1}, s38, s39')
    SWQ = SA
    def itemsW(g):
        srdn = SUK if g < 8 else (SUV if g < 16 else SWQ)
        return [([f's_add_u32 m0, s{sT}, {(g % 4) * 16384}', f's_add_u32 s38, s{sWoff}, {(g % 8) * 64 * 8192}'],
                 f'buffer_load_dwordx4 v{vWD+tt}, s[{srdn}:{srdn+3}], s38 offen offset:{tt*1024} lds', f'W{g}') for tt in range(2)]
    def items1(g):
        b = SLOT1(g)
        it = [([f's_add_u32 m0, s{sCl}, {b}', f's_add_u32 s38, s{sCoff}, {g * 64}'],
               f'buffer_load_dwordx4 v{vCD+t}, s[{SCK}:{SCK+3}], s38 offen offset:{t*1024} lds', f'H{g}') for t in range(2)]
        for part, srdn in ((0, SUK), (1, SUV)):
            it.append(([f's_lshr_b32 s39, s{sCl}, 1', f's_add_u32 m0, s39, {b + 16384 + part * 8192}', f's_add_u32 s38, s{sW1}, {g * 32 * 8192}'],
                       f'buffer_load_dwordx4 v{vWD}, s[{srdn}:{srdn+3}], s38 offen lds', f'H{g}'))
        return it
    def emit_items(items):
        for pre, ins, tok in items:
            for x in pre: p(x)
            p(ins, tokdef=tok)
    def dmaW(g): emit_items(itemsW(g))
    sXv = 97
    p(f's_getreg_b32 s{sXv}, hwreg(HW_REG_XCC_ID, 0, 4)')
    p('v_mov_b32 v22, 0'); p('v_mov_b32 v23, 0')
    X = 64
    p(f's_lshl_b32 s40, s2, 3'); p(f's_add_u32 s40, s40, s{sWave}'); p(f's_lshl_b32 s41, s40, 10')
    p(f'buffer_load_dwordx4 {vr(X,4)}, v{vL16}, s[{SX}:{SX+3}], s41 offen')
    if PF and 'PFT' in FXE and 'T2only' not in FXE: emitPFT(0)
    emit_items(items1(0))
    if PF and 'PF1mid' in FXE: emitPF1()
    gu_items = []; gu_fill = []
    G = 96
    p('s_lshr_b32 s42, s2, 3'); p('s_and_b32 s43, s2, 7'); p('s_lshl_b32 s43, s43, 6')
    p('s_mul_i32 s44, s42, 3'); p('s_lshl_b32 s45, s42, 1'); p('s_add_u32 s45, s45, 22'); p('s_cmp_lt_u32 s42, 22'); p('s_cselect_b32 s44, s44, s45')
    p('s_lshl_b32 s45, s42, 9'); p('s_add_u32 s45, s45, s43'); p('s_mul_i32 s45, s45, 192'); p(f's_add_u32 s45, s45, {WS_GU}')
    p('s_mov_b32 s46, 43691')
    for j in range(2):
        b = G + 16 * j
        p(f's_lshl_b32 s38, s{sWave}, 6'); p(f's_add_u32 s38, s38, {512*j}'); p(f'v_add_u32 v{b}, s38, v{vL}')
        p(f'v_mul_lo_u32 v{b+1}, v{b}, s46'); p(f'v_lshrrev_b32 v{b+1}, 19, v{b+1}')
        p(f'v_mul_u32_u24 v{b+2}, 12, v{b+1}'); p(f'v_sub_u32 v{b+2}, v{b}, v{b+2}')
        p(f'v_add_u32 v{b+1}, s43, v{b+1}'); p(f'v_mul_u32_u24 v{b+1}, 2752, v{b+1}')
        p(f'v_lshrrev_b32 v{b+3}, 2, v{b+2}'); p(f'v_add_u32 v{b+3}, s44, v{b+3}'); p(f'v_lshlrev_b32 v{b+3}, 5, v{b+3}')
        p(f'v_and_b32 v{b+4}, 1, v{b+2}'); p(f'v_lshlrev_b32 v{b+4}, 4, v{b+4}')
        p(f'v_add3_u32 v{b+1}, v{b+1}, v{b+3}, v{b+4}')
        p(f'v_mov_b32 v{b+5}, 0x7fffff00')
        p(f'v_cmp_gt_u32 vcc, 768, v{b}'); p(f'v_cndmask_b32 v{b+1}, v{b+5}, v{b+1}, vcc')
        p(f'v_lshlrev_b32 v{b}, 4, v{b}'); p(f'v_cndmask_b32 v{b}, v{b+5}, v{b}, vcc')
        p(f'v_and_b32 v{b+2}, 2, v{b+2}'); p(f'v_cmp_eq_u32 vcc, 0, v{b+2}')
        p(f'v_cndmask_b32 v{b+3}, v{b+5}, v{b+1}, vcc'); p(f'v_cndmask_b32 v{b+4}, v{b+1}, v{b+5}, vcc')
        gu_items.append(([], f'buffer_load_dwordx4 {vr(b+8,4)}, v{b+3}, s[{SG}:{SG+3}], 0 offen', None))
        gu_items.append(([], f'buffer_load_dwordx4 {vr(b+12,4)}, v{b+4}, s[{SU}:{SU+3}], 0 offen', None))
    early = []
    def wave_sum_i(v, t):
        nonlocal early
        for rr in (8, 4, 2, 1):
            p(f'v_add_f32_dpp v{v}, v{v}, v{v} row_ror:{rr} row_mask:0xf bank_mask:0xf')
        p(f'v_mov_b32 v{t}, v{v}'); p(f'v_permlane16_swap_b32 v{v}, v{t}'); p(f'v_add_f32 v{v}, v{v}, v{t}')
        p(f'v_mov_b32 v{t}, v{v}'); p(f'v_permlane32_swap_b32 v{v}, v{t}'); p(f'v_add_f32 v{v}, v{v}, v{t}')
    F = 72
    for j in range(4):
        p(f'v_lshlrev_b32 v{F+2*j}, 16, v{X+j}'); p(f'v_and_b32 v{F+2*j+1}, 0xffff0000, v{X+j}')
    st(p, 47, 29)
    p(f'v_add_f32 v{t0}, v{F}, v{F+1}')
    for j in range(2, 8): p(f'v_add_f32 v{t0}, v{t0}, v{F+j}')
    wave_sum_i(t0, t1)
    p(f'v_mul_f32 v{t0}, 0x{f2u(1/512):08x}, v{t0}')
    for j in range(8): p(f'v_sub_f32 v{F+j}, v{F+j}, v{t0}')
    p(f'v_mul_f32 v{t2}, v{F}, v{F}')
    for j in range(1, 8): p(f'v_fmac_f32 v{t2}, v{F+j}, v{F+j}')
    wave_sum_i(t2, t1)
    p(f'v_mov_b32 v{t3}, 0x{f2u(1e-5):08x}')
    p(f'v_fmac_f32 v{t3}, 0x{f2u(1/512):08x}, v{t2}')
    p(f'v_rsq_f32 v{t3}, v{t3}')
    for j in range(8): p(f'v_mul_f32 v{F+j}, v{F+j}, v{t3}')
    for j in range(4): p(f'v_cvt_pk_bf16_f32 v{X+j}, v{F+2*j}, v{F+2*j+1}')
    p(f'v_lshlrev_b32 v{t0}, 7, v{vL}'); p(f's_lshl_b32 s38, s{sWave}, 4'); p('s_add_u32 s38, s38, 98304'); p(f'v_add_u32 v{t0}, s38, v{t0}')
    p(f'ds_write_b128 v{t0}, {vr(X,4)}')
    if 'oldstart' in FXE: emit_items(gu_items); gu_items = []
    emit_items(items1(1))
    if PF and 'PF1late' in FXE: emitPF1()
    if PF and 'PFT' in FXE: emitPFT(1)
    if 'oldstart' in FXE or 'h2early' in FXE: emit_items(items1(2))
    p(f's_mov_b32 s{sGUd}, s45')
    for j in range(2):
        b = G + 16 * j
        gu_fill += [f'v_or_b32 v{b+8+q}, v{b+8+q}, v{b+12+q}' for q in range(4)]
        gu_fill.append(f'buffer_store_dwordx4 {vr(b+8,4)}, v{b}, s[{WS}:{WS+3}], s{sGUd} offen{SC1}')
    p(f'v_mov_b32 v{t1}, 0x7fffff00'); p(f's_lshl_b32 s40, s2, 7'); p(f's_add_u32 s40, s40, {WS_CNT}'); p(f'v_mov_b32 v{t2}, s40')
    p('s_cmp_lt_u32 s2, 192'); p('s_cselect_b32 s41, 1, 0'); p(f'v_cmp_gt_u32 vcc, s41, v0'); p(f'v_cndmask_b32 v{t2}, v{t1}, v{t2}, vcc')
    p(f'v_mov_b32 v{t3}, 0'); p(f'buffer_store_dword v{t3}, v{t2}, s[{WS}:{WS+3}], 0 offen{SC1}')
    srd(p, SWQ, 8, 0, 512*4096*2)
    p(f'v_lshlrev_b32 v26, 6, v{vL}')
    p(f'v_lshrrev_b32 v27, 4, v{vL}'); p('v_lshlrev_b32 v27, 13, v27'); p(f'v_and_b32 v30, 15, v{vL}'); p('v_lshlrev_b32 v30, 6, v30'); p('v_add_u32 v27, v27, v30')
    def itemsPFc():
        return [(['s_lshr_b32 s38, s2, 3', 's_lshl_b32 s38, s38, 16', f's_lshl_b32 s39, s{sWave}, 13', 's_add_u32 s38, s38, s39'],
                 f'buffer_load_dword v3, v26, s[{SCK}:{SCK+3}], s38 offen', None)]
    def itemsPFx():
        return [([f's_lshl_b32 s38, s{sR32}, 15', f's_and_b32 s39, s{sH}, 3', 's_lshl_b32 s39, s39, 13', 's_add_u32 s38, s38, s39', f's_add_u32 s38, s38, {WS_XN + k * 4096}'],
                 f'buffer_load_dword v3, v26, s[{WS}:{WS+3}], s38 offen sc1', None) for k in range(2)]
    def itemsPFw(srdn, grp):
        return [(['s_lshr_b32 s38, s2, 3', 's_lshl_b32 s38, s38, 4', f's_and_b32 s39, s{sWave}, 3', 's_lshl_b32 s39, s39, 2', 's_add_u32 s38, s38, s39', 's_lshl_b32 s38, s38, 13',
                  's_and_b32 s39, s2, 7', 's_lshl_b32 s39, s39, 10', 's_add_u32 s38, s38, s39'],
                 f'buffer_load_dword v3, v27, s[{srdn}:{srdn+3}], s38 offen', None)]
    p(f's_mov_b32 s{sOOB}, 0x80000000')
    st(p, 0, t0)
    sG0, sGoff, sGl, sHoff = 40, 41, 42, 43
    p('s_sub_u32 s44, 15, s%d' % sI); p(f's_cmp_lt_u32 s{sWave}, 4'); p(f's_cselect_b32 s45, s{sI}, s44')
    p(f's_and_b32 s46, s{sWave}, 3'); p('s_lshl_b32 s38, s45, 2'); p(f's_add_u32 s{sR32}, s38, s46')
    p('s_lshl_b32 s38, s45, 1'); p(f's_add_u32 s{sNTw}, s38, 2')
    if 'noskip' not in FXE:
        p('s_cmp_lt_u32 s46, 2'); p('s_cselect_b32 s39, 1, 0'); p('s_cmp_eq_u32 s45, 0'); p('s_cselect_b32 s39, 0, s39'); p(f's_sub_u32 s{sNTw}, s{sNTw}, s39')
    p('s_lshl_b32 s38, s44, 1'); p(f's_add_u32 s{sNT}, s38, 2')
    p(f's_mul_i32 s38, s{sH}, {512*192}'); p(f's_mul_i32 s39, s{sWave}, 3072'); p(f's_add_u32 s{sGoff}, s38, s39'); p(f's_add_u32 s{sGoff}, s{sGoff}, {WS_GU}'); p(f's_add_u32 s{sGl}, s39, 65536')
    p(f's_mul_i32 s38, s{sH}, 3'); p(f's_lshl_b32 s39, s{sH}, 1'); p('s_add_u32 s39, s39, 22'); p(f's_cmp_lt_u32 s{sH}, 22'); p(f's_cselect_b32 s{sG0}, s38, s39')
    p(f's_mul_i32 s38, s{sR32}, {NKS}'); p(f's_lshl_b32 s39, s{sH}, 3'); p('s_add_u32 s39, s38, s39'); p(f's_lshl_b32 s{sCtxOff}, s39, 10'); p(f's_add_u32 s{sCtxOff}, s{sCtxOff}, {WS_AF}')
    p(f's_add_u32 s38, s38, s{sG0}'); p('s_add_u32 s38, s38, 256'); p(f's_lshl_b32 s{sHoff}, s38, 10'); p(f's_add_u32 s{sHoff}, s{sHoff}, {WS_AF}')
    p(f's_lshl_b32 s38, s{sH}, 19'); p('s_lshl_b32 s39, s46, 12'); p('s_add_u32 s38, s38, s39')
    p(f's_add_u32 s{sKbase}, s38, {WS_KF}'); p(f's_add_u32 s{sVbase}, s38, {WS_VF}')
    p(f's_mov_b32 s{sKdl}, s39'); p(f's_add_u32 s{sVdl}, s39, {LDS_V}') if False else None
    p(f's_mov_b32 s44, s39')
    p(f's_lshl_b32 s38, s{sH}, 6'); p(f's_lshl_b32 s39, s{sI}, 3'); p('s_add_u32 s38, s38, s39'); p(f's_add_u32 s38, s38, s{sWave}')
    p(f's_lshl_b32 s{sOut}, s38, 13')
    def itemsG(c):
        return [([f's_add_u32 m0, s{sGl}, {c * 24576}', f's_add_u32 s38, s{sGoff}, {c * 24576}'],
                 f'buffer_load_dwordx4 v{vL16}, s[{WS}:{WS+3}], s38 offen offset:{j*1024} sc1 lds', f'G{c}') for j in range(3)]
    def itemsX(c):
        return [([f's_lshl_b32 s38, s{sR32}, 15', f's_add_u32 s38, s38, {WS_XN + c*4096}'],
                 f'buffer_load_dwordx4 {ar(4*(4*c+s),4)}, v{vL16}, s[{WS}:{WS+3}], s38 offen offset:{s*1024} sc1', f'XL{c}') for s in range(4)]
    PDW = 4
    NM = 24 * 16
    def wread(m):
        g, r = divmod(m, 16); s, n = divmod(r, 4)
        b = WF + 4 * (m % 8); off = (g % 4) * 16384 + s * 4096
        p(f'ds_read_b64_tr_b16 {vr(b,2)}, v{vW+n} offset:{off}')
        p(f'ds_read_b64_tr_b16 {vr(b+2,2)}, v{vW+n} offset:{off+1024}')
    def cread(c):
        for s in range(4): p(f'ds_read_b128 {ar(4*(4*c+s),4)}, v{vCR+s} offset:{(c % 3) * 4096}')
    def epi(part):
        for n in range(4):
            a = ACC + 16 * n
            for j in range(8): p(f'v_cvt_pk_bf16_f32 v{a+j}, v{a+2*j}, v{a+2*j+1}')
        def stores(fl):
            base = WS_KF if part == 0 else WS_VF
            for hi in range(2):
                p(f's_add_u32 s38, s{sOut}, {base + hi * 4096}')
                for q in range(4):
                    o = hi * 4 + q
                    if part == 0: n, half = o // 2, o % 2
                    else: half, n = o // 4, o % 4
                    p(f'buffer_store_dwordx4 {vr(ACC+16*n+4*half,4)}, v{vL16}, s[{WS}:{WS+3}], s38 offen offset:{q*1024}{fl}')
        dual(stores)
    vP, vPz = 22, 23
    def s1_arrive():
        p(f'v_mbcnt_lo_u32_b32 v{t0}, -1, 0'); p(f'v_mbcnt_hi_u32_b32 v{t0}, -1, v{t0}')
        p(f'v_cmp_eq_u32 vcc, 0, v{t0}'); p(f'v_mov_b32 v{t1}, 0x7fffff00'); p(f'v_cndmask_b32 v{t0}, v{t1}, v{t0}, vcc')
        p(f's_or_b32 s38, s{sXv}, 0x80'); p(f'v_mov_b32 v{t1}, s38')
        p(f'buffer_store_byte v{t1}, v{t0}, s[{DBG}:{DBG+3}], s2 offen sc1')
    def s1_issue():
        p(f'v_lshlrev_b32 v{vPz}, 2, v{vL}')
        p(f'buffer_load_dword v{vP}, v{vPz}, s[{DBG}:{DBG+3}], 0 offen sc1')
    def s1_test(L):
        p(f'v_and_b32 v{t0}, 0x80808080, v{vP}'); p(f'v_mov_b32 v{t1}, 0x80808080')
        p(f'v_cmp_ne_u32 vcc, v{t0}, v{t1}')
        p(f's_cmp_eq_u64 vcc, 0')
    def s1_check():
        lab[0] += 1; L = f'S1c{lab[0]}'
        s1_test(L); p(f's_cbranch_scc1 {L}_ok')
        p('s_mov_b32 s95, 0')
        p.label(f'{L}_sp')
        s1_issue(); s1_test(L); p(f's_cbranch_scc1 {L}_ok')
        p('s_add_u32 s95, s95, 1'); p(f's_cmp_lt_u32 s95, {SPIN_LIMIT}'); p(f's_cbranch_scc1 {L}_sp')
        p.label(f'{L}_ok')
        p('s_and_b32 s38, s2, 3'); p('s_lshl_b32 s38, s38, 3')
        p(f'v_lshrrev_b32 v{t0}, s38, v{vP}'); p(f'v_and_b32 v{t0}, 0x7f, v{t0}')
        p('s_bfe_u32 s39, s2, 0x10002')
        p(f'v_and_b32 v{t1}, 1, v{vL}'); p(f'v_cmp_eq_u32 s[94:95], s39, v{t1}')
        p(f'v_cmp_ne_u32 vcc, s{sXv}, v{t0}')
        p('s_and_b64 vcc, vcc, s[94:95]')
        p('s_cmp_eq_u64 vcc, 0'); p(f's_cselect_b32 s{sFast}, 1, 0')
        if FORCE: p(f's_mov_b32 s{sFast}, {1 if FORCE == "fast" else 0}')
    def dual(fn, kind='kv'):
        if ('slow' + kind) in FXE:
            fn(' sc1'); return
        lab[0] += 1; L = f'DU{lab[0]}'
        p(f's_cmp_eq_u32 s{sFast}, 0'); p(f's_cbranch_scc1 {L}s'); fn(''); p(f's_branch {L}j'); p.label(f'{L}s'); fn(' sc1'); p.label(f'{L}j')
    def itemsKV(which, t, tok):
        if which == 'K': pre = [f's_add_u32 m0, s44, {t*KSLOT}', f's_add_u32 s38, s{sKbase}, {t*16384}']
        else: pre = [f's_add_u32 m0, s44, {LDS_V + t*VSLOT}', f's_add_u32 s38, s{sVbase}, {t*16384}']
        return [(pre, f'buffer_load_dwordx4 v{vL16}, s[{WS}:{WS+3}], s38 offen offset:{j*1024} sc1 lds', tok) for j in range(4)]
    class VQ:
        def __init__(self, grp):
            self.q = []; self.par = 0 if grp == 'A' else 1; self.now = 0
            self.delay = int(os.environ.get('DLY', 6)) if grp == 'B' else 0
        def add(self, items, front=False, nodelay=False):
            items = [(it, self.now + (0 if nodelay else self.delay)) for it in items]
            if front: self.q = items + self.q
            else: self.q += items
        def slot(self, n):
            self.now += 1
            if n % 2 == self.par:
                for k, (it, t) in enumerate(self.q):
                    if t <= self.now:
                        emit_items([it]); self.q.pop(k); break
        def flush(self):
            emit_items([it for it, t in self.q]); self.q = []
    sCn = 45
    p(f's_lshl_b32 s{sCn}, s{sH}, 7'); p(f's_add_u32 s{sCn}, s{sCn}, {CNT_S2}')
    sS, sRB, sCT, sQ0, sWo = 48, 49, 50, 51, 52
    SO, SDn = SC, SD
    SLOT3 = [114688, 131072, 147456, 98304]
    v3W, v3D = 4, 8
    def itemsW3(g, wv, tok=True):
        pre = [f's_add_u32 m0, s{wv}, {SLOT3[g % 4]}', f's_lshl_b32 s39, s{wv}, 2', f's_add_u32 s39, s39, s{sWo}']
        if g >= 3: pre += [f's_lshl_b32 s38, s{sS}, 19', f's_add_u32 s38, s38, {(g - 3) << 16}']; srdn = SO
        else: pre += [f's_lshl_b32 s38, s{sQ0}, 14', f's_add_u32 s38, s38, {g << 16}']; srdn = SDn
        pre += ['s_add_u32 s38, s38, s39']
        return [(pre, f'buffer_load_dwordx4 v{v3D+tt}, s[{srdn}:{srdn+3}], s38 offen offset:{tt*1024} lds', f'X{g}' if tok else None) for tt in range(2)]
    def dmaW3(g, wv, tok=True): emit_items(itemsW3(g, wv, tok))
    def code_pf_att(grp):
        lab[0] += 1; L = f'CP{lab[0]}'
        p(f's_and_b32 s38, s{sWave}, 3'); p('s_cmp_lg_u32 s38, 0'); p(f's_cbranch_scc1 {L}')
        code_pf(f'ATT_{grp}', f'ATT_{grp}_end', 26, 3, 2)
        p.label(L)
    def phase12(grp):
        vq = VQ(grp)
        def w0(fn):
            if grp == 'A': only('w0', fn)
        p('s_waitcnt lgkmcnt(0)')
        p.waittok('H0'); p('s_barrier')
        p(f's_lshl_b32 s38, s{sWave}, 10'); p('s_add_u32 s38, s38, 98304'); p(f'v_add_u32 v{t0}, s38, v{vL16}')
        p(f'ds_read_b128 v[28:31], v{t0}')
        p(f'v_lshrrev_b32 v{t0}, 3, v{vL}'); p(f'v_lshlrev_b32 v{t0}, 9, v{t0}'); p(f'v_and_b32 v{t1}, 7, v{vL}'); p(f'v_lshl_add_u32 v{t0}, v{t1}, 4, v{t0}')
        p('s_lshr_b32 s38, s2, 2'); p('s_lshl_b32 s38, s38, 15'); p('s_and_b32 s39, s2, 3'); p('s_lshl_b32 s39, s39, 7'); p('s_add_u32 s38, s38, s39')
        p(f's_lshl_b32 s39, s{sWave}, 12'); p('s_add_u32 s38, s38, s39'); p(f's_add_u32 s38, s38, {WS_XN}')
        p(f'buffer_store_dwordx4 v[28:31], v{t0}, s[{WS}:{WS+3}], s38 offen{SC1}', tokdef='LNST')
        st(p, 13, t0)
        vq.add([] if ('oldstart' in FXE or 'h2early' in FXE) else items1(2), nodelay=True); vq.add(gu_items, nodelay=True); vq.add(items1(3), nodelay=True)
        gfill = list(gu_fill)
        if PF and 'PFc' in FXE: vq.add(itemsPFc())
        CF, WF1 = 32, 48
        def cread1(g):
            for q in range(2): p(f'ds_read_b128 {vr(CF + 8*(g%2) + 4*q, 4)}, v{vCR+q}')
        def wread1(m):
            g, r = divmod(m, 16); q, part, n = r >> 3, (r >> 2) & 1, r & 3
            b = WF1 + 4 * (m % 8); off = part * 8192 + q * 4096
            if 'x1nords' in FXE and m >= 16: return
            p(f'ds_read_b64_tr_b16 {vr(b,2)}, v{vW1+n} offset:{off}')
            p(f'ds_read_b64_tr_b16 {vr(b+2,2)}, v{vW1+n} offset:{off+1024}')
        cread1(0)
        for m in range(PDW): wread1(m)
        vG = 24
        p(f'v_lshrrev_b32 v{t0}, 5, v{vL}'); p(f'v_lshlrev_b32 v{t0}, 3, v{t0}'); p(f'v_bfe_u32 v{t1}, v{vL}, 2, 2'); p(f'v_add_u32 v{t0}, v{t0}, v{t1}')
        p(f'v_mul_u32_u24 v{t0}, 192, v{t0}')
        p(f'v_bfe_u32 v{t1}, v{vL}, 4, 1'); p(f'v_lshlrev_b32 v{t1}, 5, v{t1}'); p(f'v_add_u32 v{t0}, v{t0}, v{t1}')
        p(f'v_and_b32 v{t1}, 3, v{vL}'); p(f'v_lshlrev_b32 v{t1}, 3, v{t1}'); p(f'v_add_u32 v{t0}, v{t0}, v{t1}')
        p(f'v_add_u32 v{vG}, 65536, v{t0}'); p(f'v_add_u32 v{vG+1}, {65536+49152}, v{t0}')
        def vadd(reg, d):
            p(f'v_add_u32 v{reg}, 0x{d & 0xffffffff:x}, v{reg}')
        for g in range(16):
            for r in range(16):
                m = g * 16 + r; q, part, n = r >> 3, (r >> 2) & 1, r & 3
                a = ar(64 * part + 16 * n, 16); wf = vr(WF1 + 4 * (m % 8), 4); cf = vr(CF + 8 * (g % 2) + 4 * q, 4)
                cin = a if not (g == 0 and q == 0) else '0'
                if part == 1: p(f'v_mfma_f32_32x32x16_bf16 {a}, {cf}, {wf}, {cin}')
                else: p(f'v_mfma_f32_32x32x16_bf16 {a}, {wf}, {cf}, {cin}')
                if r == 11 and g < 15:
                    toks = [f'H{g+1}'] + (['LNST'] if g == 3 else [])
                    if 'x1novm' in FXE: toks = ['LNST'] if g == 3 else []
                    if toks: p.waittok(*toks)
                    if 'x1nobar' not in FXE or g == 3: p('s_barrier')
                    d = SLOT1(g + 1) - SLOT1(g)
                    for q2 in range(2): vadd(vCR + q2, d)
                    cread1(g + 1)
                    if g == 3: w0(s1_arrive)
                if m + PDW < 256 and not (r >= 12 and False):
                    if r == 12 and g < 15:
                        for n2 in range(4): vadd(vW1 + n2, SLOT1(g + 1) - SLOT1(g))
                    wread1(m + PDW)
                if r == 12:
                    if g + 4 < 16 and 'x1novm' not in FXE: vq.add(items1(g + 4))
                    if g == 12: vq.add(itemsW(16) + itemsW(17))
                    if g == 13: vq.add(itemsW(18))
                    if PF and g == 6 and grp == 'B' and 'noPFq' not in FXE: vq.add(itemsPFw(SWQ, grp))
                    if PF and g == 0 and 'noPFuk' not in FXE: vq.add(itemsPFw(SUK if grp == 'A' else SUV, grp))
                    if g == 8: s1_issue()
                    if g == 9: s1_check()
                    if PF and g == 10 and 'noPFx' not in FXE: vq.add(itemsPFx())
                if g == 2 and gfill and r >= 2:
                    x = gfill.pop(0); p(x, tokdef='LNST' if x.startswith('buffer_store') else None)
                vq.slot(m)
            if 'chst' in os.environ.get('FX', ''): st(p, 16 + g, t0)
        vq.flush()
        def epi_half(t, half, T, P_):
            part, n = divmod(t, 4)
            ops = [f'v_accvgpr_read_b32 v{T+j2}, a{16*t+8*half+j2}' for j2 in range(8)]
            ops += [f'v_cvt_pk_bf16_f32 v{P_+j2}, v{T+2*j2}, v{T+2*j2+1}' for j2 in range(4)]
            def stores(fl):
                o = ((2*n + half) if part == 0 else (half * 4 + n)) * 1024
                p(f's_add_u32 s38, s{sOut}, {(WS_KF if part == 0 else WS_VF) + (o & ~4095)}')
                p(f'buffer_store_dwordx4 {vr(P_,4)}, v{vL16}, s[{WS}:{WS+3}], s38 offen offset:{o & 4095}{fl}', tokdef='KVST')
            return ops, stores
        for t in range(3):
            for half in range(2):
                ops, stores = epi_half(t, half, 80 + 8 * ((2*t+half) % 4), 112 + 4 * ((2*t+half) % 4))
                for x in ops: p(x)
                dual(stores)
            emit_items(itemsX(t))
        fill = []
        for t in range(3, 8):
            for half in range(2):
                ops, stores = epi_half(t, half, 10, 28)
                fill += ops + [('st', stores)]
            fill += [('x', t)]
        def filler(k):
            for _ in range(k):
                if not fill: return
                f = fill.pop(0)
                if isinstance(f, tuple):
                    if f[0] == 'st': dual(f[1])
                    else: vq.add(itemsX(f[1]), nodelay=True)
                else: p(f)
        st(p, 2, t0); stamp_real(p, 43, sWave, t0)
        p.waittok('W16'); p('s_barrier')
        for m in range(256, 256 + PDW): wread(m)
        for g in range(16, 24):
            c = g - 16
            assert not any(it[2] == f'XL{c}' for it, t in vq.q), ('XL', c)
            for r in range(16):
                m = g * 16 + r; s, n = divmod(r, 4)
                a = vr(ACC + 16 * n, 16); wf = vr(WF + 4 * (m % 8), 4); cf = ar(4 * (4 * c + s), 4)
                cin = a if not (c == 0 and s == 0) else '0'
                p(f'v_mfma_f32_32x32x16_bf16 {a}, {wf}, {cf}, {cin}')
                if r == 16 - PDW - 1:
                    toks = [f'W{g+1}'] if g < 23 else ['G0', 'G1', 'G2', 'G3']
                    if g == 21:
                        assert not fill
                        toks.append('KVST')
                    p.waittok(*toks); p('s_barrier')
                    if g == 21: w0(lambda: sy.arrive(WS, f's{sCn}', t0, t1))
                if m + PDW < NM: wread(m + PDW)
                if r == 16 - PDW:
                    if g + 3 < 24: vq.add(itemsW(g + 3), front=True)
                    if g == 23: w0(lambda: sy.poll_issue(WS, f's{sCn}', vP, vPz))
                    if g == 22: code_pf_att(grp)
                    if g in (19, 20): vq.add(itemsG(g - 19))
                    if g == 21: vq.add(itemsG(2) + itemsG(3))
                filler(2)
                vq.slot(m)
            if 'chst' in os.environ.get('FX', ''): st(p, 16 + g, t0)
        QP = [104, 108, 120, 124, 96, 100, 112, 116]
        for n in (2, 3, 0, 1):
            a = ACC + 16 * n
            for j in range(16): p(f'v_mul_f32 v{a+j}, 0x{f2u(QSCALE):08x}, v{a+j}')
            for j in range(8): p(f'v_cvt_pk_bf16_f32 v{QP[2*n] + j}, v{a+2*j}, v{a+2*j+1}')
        st(p, 3, t0)
        GA = [64, 80, 0]
        GA[2] = 4
        def gread(m, nt):
            per = 8 * nt; c, r = divmod(m, per); s, t = divmod(r, nt)
            b = WF + 4 * (m % 8); off = (c % 2) * 24576 + s * 3072 + t * 64; a = vG + c // 2
            p(f'ds_read_b64_tr_b16 {vr(b,2)}, v{a} offset:{off}')
            p(f'ds_read_b64_tr_b16 {vr(b+2,2)}, v{a} offset:{off+768}')
        def gu(nt):
            per = 8 * nt; tot = 4 * per
            vq.q = list(pend)
            for m in range(PDW): gread(m, nt)
            for m in range(tot):
                c, r = divmod(m, per); s, t = divmod(r, nt)
                a = vr(GA[t], 16); wf = vr(WF + 4 * (m % 8), 4); xf = ar(4 * (8 * c + s), 4)
                cin = a if not (c == 0 and s == 0) else '0'
                p(f'v_mfma_f32_32x32x16_bf16 {a}, {wf}, {xf}, {cin}')
                if m == 6: w0(lambda: sy.poll_check(WS, f's{sCn}', vP, vPz, 8))
                if r == per - PDW - 1 and c < 2: p('s_barrier')
                if m + PDW < tot: gread(m + PDW, nt)
                if r == per - PDW and c == 0 and grp == 'A': vq.add(itemsKV('K', 0, 'K0') + itemsKV('K', 1, 'K1') + itemsKV('V', 0, 'V0') + itemsKV('K', 2, 'K2'))
                if r == per - PDW and c == 1 and grp == 'A': vq.add(itemsKV('V', 1, 'V1'))
                vq.slot(m)
            vq.flush()
            for t in range(nt):
                a = GA[t]
                for j in range(8):
                    T = WF + 4 * (j % 4)
                    p(f'v_mul_f32 v{T}, 0x{f2u(-1.4426950408889634):08x}, v{a+j}')
                    p(f'v_exp_f32 v{T}, v{T}')
                    p(f'v_mul_f32 v{T+1}, v{a+j}, v{a+8+j}')
                    p(f'v_add_f32 v{T}, 1.0, v{T}')
                    p(f'v_rcp_f32 v{T}, v{T}')
                    p(f'v_mul_f32 v{a+j}, v{T+1}, v{T}')
                for j in range(4): p(f'v_cvt_pk_bf16_f32 v{a+j}, v{a+2*j}, v{a+2*j+1}')
            def hst(fl):
                for t in range(nt): p(f'buffer_store_dwordx4 {vr(GA[t],4)}, v{vL16}, s[{WS}:{WS+3}], s{sHoff} offen offset:{t*1024}{fl}', tokdef='HST')
            dual(hst, 'h')
        pend = list(vq.q)
        p(f's_cmp_ge_u32 s{sH}, 22'); p(f's_cbranch_scc1 K2_gu2{grp}')
        gu(3); p(f's_branch K2_gud{grp}')
        p.label(f'K2_gu2{grp}'); gu(2)
        p.label(f'K2_gud{grp}')
        st(p, 4, t0); stamp_real(p, 40, sWave, t0)
        for s in range(8):
            for j in range(4): p(f'v_accvgpr_write_b32 a{AQ+4*s+j}, v{QP[s]+j}')
        p(f'v_mov_b32 v{VL16}, v{vL16}'); p(f'v_mov_b32 v{VDMA}, v{vL16}')
        p(f'v_and_b32 v3, 31, v{vL}'); p(f'v_lshrrev_b32 v4, 5, v{vL}'); p('v_lshlrev_b32 v4, 2, v4'); p('v_sub_u32 v3, v3, v4')
        p(f's_lshl_b32 s38, s{sR32}, 5'); p('v_add_u32 v3, s38, v3'); p('v_cvt_f32_i32 v3, v3'); p('v_add_f32 v3, 0.5, v3')
        p(f'v_mul_f32 v{VT}, 0x{f2u(BIG):08x}, v3')
        p(f'v_mov_b32 v{VK}, v{VL16}'); p(f'v_add_u32 v{VV}, {LDS_V}, v{VL16}')
        p(f's_mov_b32 s{sKdl}, s44'); p(f's_add_u32 s{sVdl}, s44, {LDS_V + 2*VSLOT}')
        p(f's_mov_b32 s{sKsl}, 0'); p(f's_mov_b32 s{sVsl}, {LDS_V}')
        p(f's_mov_b32 s{sThr}, 0x46800000'); p(f's_mov_b32 s{sOOB}, 0x80000000')
        p(f's_add_u32 s{sKbase}, s{sKbase}, {3*16384}'); p(f's_add_u32 s{sVbase}, s{sVbase}, {2*16384}')
        p(f's_mov_b32 s{sKt}, 3'); p(f's_mov_b32 s{sKdma}, s{sKbase}'); p(f's_mov_b32 s{sVdma}, s{sVbase}')
        p(f's_and_b32 s{sS}, s2, 7'); p(f's_lshr_b32 s{sRB}, s2, 5'); p(f's_lshr_b32 s{sCT}, s2, 3'); p(f's_and_b32 s{sCT}, s{sCT}, 3')
        p(f's_lshl_b32 s38, s{sS}, 2'); p('s_mul_i32 s39, s38, 3'); p('s_lshl_b32 s53, s38, 1'); p('s_add_u32 s53, s53, 22'); p('s_cmp_lt_u32 s38, 22'); p(f's_cselect_b32 s{sQ0}, s39, s53')
        p(f's_lshl_b32 s{sWo}, s{sCT}, 8')
        srd(p, SO, 14, 0, 4096*512*2); srd(p, SDn, 22, 0, 1376*512*2)
        wtr_addr_setup(p, v3W, vL, 12, 13, True)
        wdma_addr_setup(p, v3D, vL, 12, 13, 1024)
    G3 = {}
    p(f's_cmp_ge_u32 s{sWave}, 4'); p('s_cbranch_scc1 K2_B')
    phase12('A')
    p.label('ATT_A')
    def s3h_arrive():
        for expr in ([f's_lshr_b32 s55, s{sI}, 1'], [f's_sub_u32 s55, 15, s{sI}', 's_lshr_b32 s55, s55, 1']):
            for x in expr: p(x)
            p(f's_lshl_b32 s38, s{sS}, 3'); p('s_add_u32 s55, s55, s38'); p('s_lshl_b32 s55, s55, 7'); p(f's_add_u32 s55, s55, {CNT_S3H}')
            sy.arrive(WS, 's55', T0, T1)
    attention(p, True, 'A', tokwait=True, pre_tok='HST', post_init=lambda: only('w0', s3h_arrive))
    p(f's_sub_u32 s{sIt}, s{sNT}, s{sNTw}')
    dma_group(p); dma_advance(p)
    epilogue(p, lambda fn: dual(fn, 'c'))
    p('s_waitcnt vmcnt(16)'); p('s_barrier')
    dma_group(p); dma_advance(p)
    p(f's_lshl_b32 s53, s{sWave}, 11'); p('s_add_u32 s54, s53, 8192')
    for g in range(3):
        dmaW3(g, 53, tok=False); dmaW3(g, 54, tok=False)
    npf = 0
    if PF:
        p(f'v_lshlrev_b32 v{T2}, 6, v{vL}'); p('s_lshr_b32 s38, s2, 3'); p('s_lshl_b32 s39, s38, 14'); p(f's_lshl_b32 s55, s{sS}, 19'); p('s_add_u32 s39, s39, s55')
        p(f's_lshl_b32 s55, s{sWave}, 12'); p('s_add_u32 s39, s39, s55')
        p(f'buffer_load_dword v{T3}, v{T2}, s[{SO}:{SO+3}], s39 offen')
        p('s_mul_i32 s39, s38, 6144'); p(f's_lshl_b32 s55, s{sQ0}, 14'); p('s_add_u32 s39, s39, s55'); p(f's_and_b32 s55, s{sWave}, 1'); p('s_lshl_b32 s55, s55, 12'); p('s_add_u32 s39, s39, s55')
        p(f'buffer_load_dword v{T3}, v{T2}, s[{SDn}:{SDn+3}], s39 offen')
        npf = 2
    def s3h_wait():
        p(f's_lshl_b32 s38, s{sS}, 3'); p(f's_add_u32 s55, s{sRB}, s38'); p('s_lshl_b32 s55, s55, 7'); p(f's_add_u32 s55, s55, {CNT_S3H}')
        sy.spin(WS, 's55', T2, T3, 8)
    p(f's_waitcnt vmcnt({20 + npf})'); p('s_barrier')
    p(f's_lshr_b32 s55, s{sI}, 1'); p(f's_lshl_b32 s38, s{sS}, 3'); p('s_add_u32 s55, s55, s38'); p('s_lshl_b32 s55, s55, 7'); p(f's_add_u32 s55, s55, {CNT_S3}')
    only('w3', lambda: sy.arrive(WS, 's55', T0, T1))
    if 'wbl2' in FXE:
        p(f's_cmp_lg_u32 s{sWave}, 3'); p('s_cbranch_scc1 NOWB'); p('buffer_wbl2 sc1'); p.label('NOWB')
    p(f's_sub_u32 s{sIt}, s{sIt}, 2'); p(f's_cmp_eq_u32 s{sIt}, 0'); p('s_cbranch_scc1 A_done')
    p.label('A_ld')
    dma_group(p); dma_advance(p)
    if 'noldw' not in FXE: p('s_waitcnt vmcnt(8)')
    p('s_barrier')
    p(f's_sub_u32 s{sIt}, s{sIt}, 1'); p(f's_cmp_lg_u32 s{sIt}, 0'); p('s_cbranch_scc1 A_ld')
    p.label('A_done')
    only('w0', s3h_wait)
    only('w0', lambda: code_pf('K3_start', 'K_code_end', 16, 18, 3))
    p('s_branch K3_start')
    p.label('ATT_A_end')
    rare_paths(p, 'A')
    p.label('K2_B')
    phase12('B')
    p.label('ATT_B')
    if 'noprio' not in FXE: p('s_setprio 2')
    attention(p, False, 'B', pre_tok='HST')
    if 'noprio' not in FXE: p('s_setprio 0')
    st(p, 5, 100); stamp_real(p, 41, sWave, 100)
    p(f's_cmp_eq_u32 s{sNTw}, s{sNT}'); p('s_cbranch_scc1 B_noxb'); p('s_barrier'); p.label('B_noxb')
    epilogue(p, lambda fn: dual(fn, 'c'))
    p('s_branch K3_start')
    p.label('ATT_B_end')
    rare_paths(p, 'B')
    p.label('K3_start')
    p('s_waitcnt vmcnt(0)'); p('s_barrier')
    st(p, 6, 100)
    sS3 = 44
    def s3():
        p(f's_sub_u32 s55, 15, s{sI}'); p('s_lshr_b32 s55, s55, 1'); p(f's_lshl_b32 s38, s{sS}, 3'); p('s_add_u32 s55, s55, s38'); p('s_lshl_b32 s55, s55, 7'); p(f's_add_u32 s55, s55, {CNT_S3}')
        sy.arrive(WS, 's55', 16, 17)
    only('w0', s3)
    p(f's_lshl_b32 s38, s{sS}, 3'); p(f's_add_u32 s{sS3}, s{sRB}, s38'); p(f's_lshl_b32 s{sS3}, s{sS3}, 7'); p(f's_add_u32 s{sS3}, s{sS3}, {CNT_S3}')
    sAoff, sT3, sR3, sAh = 53, 54, 64, 55
    p(f's_lshl_b32 s38, s{sRB}, 3'); p(f's_add_u32 s{sR3}, s38, s{sWave}'); p(f's_mul_i32 s38, s{sR3}, {NKS}')
    p(f's_lshl_b32 s39, s{sS}, 5'); p('s_add_u32 s39, s39, s38'); p(f's_lshl_b32 s{sAoff}, s39, 10'); p(f's_add_u32 s{sAoff}, s{sAoff}, {WS_AF}')
    p(f's_add_u32 s39, s38, s{sQ0}'); p('s_add_u32 s39, s39, 256'); p(f's_lshl_b32 s{sAh}, s39, 10'); p(f's_add_u32 s{sAh}, s{sAh}, {WS_AF}')
    p(f's_lshl_b32 s{sT3}, s{sWave}, 11')
    def itemsA(g):
        it = []
        for q in range(4):
            pre = [f's_add_u32 s38, s{sAoff}, {(g-3)*4096}'] if g >= 3 else [f's_add_u32 s38, s{sAh}, {g*4096}']
            if g == 2:
                pre += [f's_cmp_lt_u32 s{sS}, {5 if q >= 2 else 6}', f's_cselect_b32 s38, s38, s{sOOB}']
            it.append((pre, f'buffer_load_dwordx4 {ar(16*(g%4)+4*q,4)}, v{vL16}, s[{WS}:{WS+3}], s38 offen offset:{q*1024} sc1', f'AL{g}'))
        return it
    for c in range(3): emit_items(itemsA(c))
    st(p, 7, 100)
    NCH = 11
    for n in range(4): p(f'v_add_u32 v{v3W+n}, 98304, v{v3W+n}')
    def wread3(m):
        g, r = divmod(m, 16); s, n = divmod(r, 4)
        b = WF + 4 * (m % 8); off = SLOT3[g % 4] - 98304 + s * 4096
        p(f'ds_read_b64_tr_b16 {vr(b,2)}, v{v3W+n} offset:{off}')
        p(f'ds_read_b64_tr_b16 {vr(b+2,2)}, v{v3W+n} offset:{off+2048}')
    def phase3(grp):
        vq = VQ(grp)
        if grp == 'A': only('w0', lambda: sy.poll_issue(WS, f's{sS3}', 16, 17))
        for m in range(PDW): wread3(m)
        for g in range(NCH):
            assert not any(it[2] == f'AL{g}' for it, t in vq.q), ('AL', g)
            for r in range(16):
                m = g * 16 + r; s, n = divmod(r, 4)
                a = vr(ACC + 16 * n, 16); wf = vr(WF + 4 * (m % 8), 4); xf = ar(16 * (g % 4) + 4 * s, 4)
                cin = a if not (g == 0 and s == 0) else '0'
                p(f'v_mfma_f32_32x32x16_bf16 {a}, {wf}, {xf}, {cin}')
                if r == 16 - PDW - 1 and g < NCH - 1:
                    if g == 0 and grp == 'A': only('w0', lambda: sy.poll_check(WS, f's{sS3}', 16, 17, 8))
                    if g + 1 >= 3: p.waittok(f'X{g+1}')
                    p('s_barrier')
                if m + PDW < NCH * 16: wread3(m + PDW)
                if r == 16 - PDW and g + 3 < NCH: vq.add(itemsW3(g + 3, sT3), front=True)
                if r == 15 and g + 3 < NCH: vq.add(itemsA(g + 3))
                vq.slot(m)
        p('s_branch K3_epi')
    p(f's_cmp_ge_u32 s{sWave}, 4'); p('s_cbranch_scc1 K3_B')
    phase3('A')
    p.label('K3_B')
    phase3('B')
    p.label('K3_epi')
    p(f's_lshl_b32 s38, s{sS}, 6'); p(f's_add_u32 s38, s38, s{sR3}'); p('s_lshl_b32 s38, s38, 4'); p(f's_lshl_b32 s39, s{sCT}, 2'); p('s_add_u32 s38, s38, s39'); p('s_lshl_b32 s38, s38, 11')
    p(f's_add_u32 s38, s38, {WS_PT}')
    for n in range(4):
        a = ACC + 16 * n
        for j in range(8): p(f'v_cvt_pk_bf16_f32 v{a+j}, v{a+2*j}, v{a+2*j+1}')
        if n == 2: p('s_add_u32 s38, s38, 4096')
        for half in range(2): p(f'buffer_store_dwordx4 {vr(a+4*half,4)}, v{vL16}, s[{WS}:{WS+3}], s38 offen offset:{(n%2)*2048+half*1024}{SC1}')
    st(p, 8, 100); stamp_real(p, 42, sWave, 100)
    SX4, SO4 = SA, SB
    p(f's_mov_b32 s53, s{sS}'); p(f's_mov_b32 s54, s{sRB}'); p(f's_mov_b32 s55, s{sCT}')
    srd(p, SX4, 4, 0, 2048*512*2)
    srd(p, 72, 24, 0, 2048*512*2)
    p('s_lshl_b32 s38, s54, 3'); p('s_add_u32 s40, s38, s53')
    p('s_lshl_b32 s38, s55, 2'); p(f's_and_b32 s39, s{sWave}, 3'); p('s_add_u32 s41, s38, s39')
    p(f's_lshr_b32 s42, s{sWave}, 2')
    p('s_lshl_b32 s38, s40, 15'); p('s_lshl_b32 s39, s41, 6'); p('s_add_u32 s43, s38, s39'); p('s_lshl_b32 s39, s42, 5'); p('s_add_u32 s43, s43, s39')
    p(f'v_and_b32 v3, 31, v{vL}'); p('v_lshlrev_b32 v3, 10, v3'); p(f'v_lshrrev_b32 v4, 5, v{vL}'); p('v_lshlrev_b32 v4, 3, v4'); p('v_add_u32 v3, v3, v4')
    for g in range(2): p(f'buffer_load_dwordx2 {vr(8+2*g,2)}, v3, s[{SX4}:{SX4+3}], s43 offen offset:{g*16}')
    p('s_waitcnt vmcnt(0)'); p('s_barrier')
    st(p, 11, 100)
    def s4():
        p('s_lshl_b32 s38, s54, 2'); p('s_add_u32 s38, s38, s55'); p('s_lshl_b32 s44, s38, 7'); p(f's_add_u32 s44, s44, {CNT_S4}')
        sy.arrive(WS, 's44', 16, 17)
        sy.spin(WS, 's44', 16, 17, 8)
    only('w0', s4)
    p('s_barrier')
    st(p, 12, 100)
    p('s_lshl_b32 s38, s40, 4'); p('s_add_u32 s38, s38, s41'); p('s_lshl_b32 s38, s38, 11'); p('s_lshl_b32 s39, s42, 10'); p('s_add_u32 s38, s38, s39'); p(f's_add_u32 s38, s38, {WS_PT}')
    for s in range(8):
        p(f'buffer_load_dwordx4 {vr(16+4*s,4)}, v{vL16}, s[{WS}:{WS+3}], s38 offen sc1')
        if s < 7: p(f's_add_u32 s38, s38, {64*16*2048}')
    A = 64
    for j in range(4):
        p(f'v_lshlrev_b32 v{A+2*j}, 16, v{8+j}'); p(f'v_and_b32 v{A+2*j+1}, 0xffff0000, v{8+j}')
    for s in range(8):
        for j in range(4):
            src = 16 + 4 * s + j
            p(f'v_lshlrev_b32 v5, 16, v{src}'); p(f'v_and_b32 v6, 0xffff0000, v{src}')
            p(f'v_add_f32 v{A+2*j}, v{A+2*j}, v5'); p(f'v_add_f32 v{A+2*j+1}, v{A+2*j+1}, v6')
    for j in range(4): p(f'v_cvt_pk_bf16_f32 v{8+j}, v{A+2*j}, v{A+2*j+1}')
    for g in range(2): p(f'buffer_store_dwordx2 {vr(8+2*g,2)}, v3, s[72:75], s43 offen offset:{g*16}')
    st(p, 9, 100); stamp_real(p, 10, sWave, 100)
    p.label('K_end'); p('s_endpgm')
    p.label('K_code_end')
    for i in p.ins:
        if 'sc1_ATOM' in i.text: i.text = i.text.replace('sc1_ATOM', 'sc1')
    p.finalize()
    return p

if __name__ == '__main__':
    out = [a for a in sys.argv[1:] if not a.startswith('-')][0]
    p = build()
    hdr = open('parallel_sum__compressed_kv_cla__swiglu_ffn__prompt.s.ref').read().split('; Override')[0]
    if '-l' in sys.argv: s = hdr + f'; @launch kernel={NAME} grid=(256,1,1) block=(512,1,1) lds=163840\n'
    else: s = hdr + f'; @launch grid=(256,1,1) block=(512,1,1) lds=163840\n'
    s += '.amdgcn_target "amdgcn-amd-amdhsa--gfx950"\n' + kernel_head(NAME) + p.text() + kernel_desc(NAME, 128, 128)
    open(out, 'w').write(s)
    print('written', out, len(s), 'instrs', len(p.ins))
```

```python
import sys, os
sys.path.insert(0, 'gen')
import common
common.STAMPS = '-s' in sys.argv
from common import *
from attn import *
import attn
NAME = 'parallel_sum__compressed_kv_cla__swiglu_ffn__prompt_kernel'
QSCALE = 128 ** -0.5 * 1.4426950408889634
WS = 28; DBG = 32
SA, SB, SC, SD, SE, SF = 48, 52, 68, 72, 76, 80
SC1 = '' if 'nosc1' in os.environ.get('FX', '') else ' sc1'
NOINV = 'noinv' in os.environ.get('FX', '')
attn.STSC = SC1
SPIN_LIMIT = 1 << 18
CNT_S2, CNT_S3, CNT_S4, CNT_S3H = WS_CNT, WS_CNT + 32 * 128, WS_CNT + 96 * 128, WS_CNT + 128 * 128
sFast = 96
LD1 = ' sc1'
PF = 'nopf' not in os.environ.get('FX', '')
FORCE = os.environ.get('FORCE', '')
FXE = os.environ.get('FX', '')
vAT, vONE, vPOLL, vZ = 124, 125, 126, 127

def st(p, idx, vt):
    stamp(p, idx, sWave, vt)

class Sync:
    def __init__(self, p): self.p = p; self.n = 0; self.tail = []
    def arrive(self, srdn, soff, t0, t1, val='1'):
        p = self.p
        p(f'v_mbcnt_lo_u32_b32 v{t0}, -1, 0'); p(f'v_mbcnt_hi_u32_b32 v{t0}, -1, v{t0}')
        p(f'v_cmp_eq_u32 vcc, 0, v{t0}'); p(f'v_mov_b32 v{t1}, 0x7fffff00')
        p(f'v_cndmask_b32 v{t0}, v{t1}, v{t0}, vcc')
        p(f'v_mov_b32 v{t1}, {val}')
        p(f'buffer_atomic_add v{t1}, v{t0}, s[{srdn}:{srdn+3}], {soff} offen sc1_ATOM', tokdef='ATOM')
    def poll_issue(self, srdn, soff, vp, vz):
        p = self.p
        p(f'v_mov_b32 v{vz}, 0')
        p(f'buffer_load_dword v{vp}, v{vz}, s[{srdn}:{srdn+3}], {soff} offen sc1')
    def poll_check(self, srdn, soff, vp, vz, target, mask=None):
        p = self.p; self.n += 1; L = f'SY{self.n}'
        p(f'v_readfirstlane_b32 s38, v{vp}')
        if mask: p(f's_and_b32 s39, s38, {mask}'); p(f's_cmp_ge_u32 s39, {target}')
        else: p(f's_cmp_ge_u32 s38, {target}')
        p(f's_cbranch_scc1 {L}_ok')
        self.spin(srdn, soff, vp, vz, target, mask)
        p.label(f'{L}_ok')
    def spin(self, srdn, soff, vp, vz, target, mask=None):
        p = self.p; self.n += 1; L = f'SP{self.n}'
        p('s_mov_b32 s95, 0'); p(f'v_mov_b32 v{vz}, 0')
        p.label(L)
        p(f'buffer_load_dword v{vp}, v{vz}, s[{srdn}:{srdn+3}], {soff} offen sc1')
        p(f'v_readfirstlane_b32 s38, v{vp}')
        if mask: p(f's_and_b32 s39, s38, {mask}'); p(f's_cmp_ge_u32 s39, {target}')
        else: p(f's_cmp_ge_u32 s38, {target}')
        p(f's_cbranch_scc1 {L}_d')
        p('s_add_u32 s95, s95, 1'); p(f's_cmp_lt_u32 s95, {SPIN_LIMIT}'); p(f's_cbranch_scc1 {L}')
        p.label(f'{L}_d')

def build():
    p = Prog(); sy = Sync(p)
    lab = [0]
    def only(cond, fn):
        lab[0] += 1; L = f'ON{lab[0]}'
        if cond == 'w0': p(f's_cmp_lg_u32 s{sWave}, 0')
        elif cond == 'w3': p(f's_cmp_lg_u32 s{sWave}, 3')
        else: p(f's_cmp_ge_u32 s{sWave}, 4')
        p(f's_cbranch_scc1 {L}'); fn(); p.label(L)
    vL, vL16 = 1, 2
    def code_pf(lab0, lab1, va, vd, n):
        if 'nocodepf' in FXE: return
        for k in range(n):
            p(f's_mov_b32 s38, {lab0}-{NAME}+{k*8192}'); p(f'v_lshl_add_u32 v{va}, v{vL}, 7, s38')
            p(f's_mov_b32 s38, {lab1}-{NAME}-128'); p(f'v_min_u32 v{va}, s38, v{va}')
            p(f'v_mov_b32 v{va+1}, s101'); p(f'v_add_co_u32 v{va}, vcc, s100, v{va}'); p(f'v_addc_co_u32 v{va+1}, vcc, 0, v{va+1}, vcc')
            p(f'global_load_dword v{vd}, v[{va}:{va+1}], off')
    vW, vWD = 4, 8
    t0, t1, t2, t3 = 18, 19, 20, 21
    WF, ACC = 32, 64
    sWoff, sCoff, sCl, sOut, sT = 65, 67, 57, 56, 39
    sT = 47
    p('s_cmp_ge_u32 s2, 256'); p('s_cbranch_scc1 K_end')
    if 'nocodepf' not in FXE:
        p('s_getpc_b64 s[100:101]')
        p.label('K_pc')
        p(f's_sub_u32 s100, s100, K_pc-{NAME}'); p('s_subb_u32 s101, s101, 0')
        p('s_lshr_b32 s38, s2, 3'); p('s_lshl_b32 s38, s38, 5'); p('v_and_b32 v4, 31, v0'); p('v_add_u32 v4, s38, v4'); p('v_lshlrev_b32 v4, 7, v4')
        p(f's_mov_b32 s38, K_code_end-{NAME}-128'); p('v_min_u32 v4, s38, v4')
        p('v_and_b32 v6, 63, v0'); p('v_lshlrev_b32 v6, 7, v6'); p('v_lshrrev_b32 v7, 6, v0'); p('v_mul_u32_u24 v7, 0x2000, v7'); p('v_add_u32 v6, v6, v7'); p('v_subrev_u32 v6, 0x2000, v6')
        p('v_cmp_gt_u32 vcc, 192, v0'); p('v_cndmask_b32 v6, 0, v6, vcc')
        p('v_cmp_gt_u32 vcc, 64, v0'); p('v_cndmask_b32 v4, v6, v4, vcc')
        p('v_mov_b32 v5, s101'); p('v_add_co_u32 v4, vcc, s100, v4'); p('v_addc_co_u32 v5, vcc, 0, v5, vcc')
        p('global_load_dword v3, v[4:5], off')
    p('s_load_dwordx16 s[4:19], s[0:1], 0'); p('s_load_dwordx8 s[20:27], s[0:1], 64'); p('s_load_dwordx2 s[92:93], s[0:1], 96')
    stamp_init(p)
    p(f'v_lshrrev_b32 v{t0}, 6, v0'); p(f'v_readfirstlane_b32 s{sWave}, v{t0}')
    p(f'v_and_b32 v{vL}, 63, v0'); p(f'v_lshlrev_b32 v{vL16}, 4, v{vL}')
    p('s_and_b32 s38, s2, 7'); p('s_lshl_b32 s38, s38, 2'); p('s_lshr_b32 s39, s2, 3'); p('s_and_b32 s39, s39, 3')
    p(f's_add_u32 s{sH}, s38, s39'); p(f's_lshr_b32 s{sI}, s2, 5')
    wtr_addr_setup(p, vW, vL, t0, t1, False)
    wdma_addr_setup(p, vWD, vL, t0, t1, 8192)
    vCD, vCR, vW1 = 10, 12, 14
    p(f'v_bfe_u32 v{t0}, v{vL}, 4, 2'); p(f'v_and_b32 v{t1}, 3, v{vL}'); p(f'v_xor_b32 v{t0}, v{t0}, v{t1}'); p(f'v_lshlrev_b32 v{t0}, 4, v{t0}')
    p(f'v_lshrrev_b32 v{t1}, 2, v{vL}'); p(f'v_lshl_add_u32 v{vCD}, v{t1}, 10, v{t0}'); p(f'v_add_u32 v{vCD+1}, {16*1024-1024}, v{vCD}')
    SLOT1 = lambda g: ((g + 4) % 5) * 32768
    p(f's_lshl_b32 s{sCl}, s{sWave}, 11')
    p(f'v_and_b32 v{t0}, 31, v{vL}'); p(f'v_bfe_u32 v{t1}, v{vL}, 2, 2'); p(f'v_lshrrev_b32 v{t2}, 5, v{vL}')
    p(f's_add_u32 s38, s{sCl}, {SLOT1(0)}')
    for q in range(2):
        p(f'v_add_u32 v{t3}, {2*q}, v{t2}'); p(f'v_xor_b32 v{t3}, v{t3}, v{t1}'); p(f'v_lshlrev_b32 v{t3}, 4, v{t3}')
        p(f'v_lshl_add_u32 v{t3}, v{t0}, 6, v{t3}'); p(f'v_add_u32 v{vCR+q}, s38, v{t3}')
    for n in range(4): p(f'v_add_u32 v{vW1+n}, {SLOT1(0) + 16384}, v{vW+n}')
    p('s_waitcnt lgkmcnt(0)')
    srd(p, WS, 92, 0, WS_SIZE); srd(p, DBG, 26, 0, 256)
    if common.STAMPS: srd(p, 84, 92, WS_TS, 1 << 20)
    st(p, 44, 29)
    SX, SCK, SUK, SUV, SG, SU = SA, SB, SC, SD, SE, SF
    srd(p, SX, 4, 0, 2048*512*2); srd(p, SCK, 6, 0, 2048*512*2); srd(p, SUK, 10, 0, 512*4096*2); srd(p, SUV, 12, 0, 512*4096*2)
    srd(p, SG, 18, 0, 512*1376*2); srd(p, SU, 20, 0, 512*1376*2)
    def emitPF1():
        p(f'v_bfe_u32 v27, v{vL}, 4, 1'); p('v_lshlrev_b32 v27, 13, v27'); p(f'v_and_b32 v26, 15, v{vL}'); p('v_lshlrev_b32 v26, 6, v26'); p('v_add_u32 v27, v27, v26')
        p(f'v_mov_b32 v26, 0x7fffff00'); p(f'v_cmp_gt_u32 vcc, 32, v{vL}'); p('v_cndmask_b32 v27, v26, v27, vcc')
        p('s_lshr_b32 s40, s2, 3')
        p('s_lshl_b32 s38, s40, 4'); p(f's_lshl_b32 s39, s{sWave}, 1'); p('s_add_u32 s38, s38, s39'); p('s_lshl_b32 s38, s38, 13')
        p('s_and_b32 s39, s2, 7'); p('s_lshl_b32 s39, s39, 10'); p('s_add_u32 s41, s38, s39')
        p(f'buffer_load_dword v3, v27, s[{SUK}:{SUK+3}], s41 offen'); p(f'buffer_load_dword v3, v27, s[{SUV}:{SUV+3}], s41 offen')
        p(f'v_lshlrev_b32 v26, 10, v{vL}'); p('s_lshl_b32 s38, s40, 16'); p(f's_lshl_b32 s39, s{sWave}, 6'); p('s_add_u32 s38, s38, s39')
        p(f'buffer_load_dword v3, v26, s[{SCK}:{SCK+3}], s38 offen'); p(f'buffer_load_dword v3, v26, s[{SCK}:{SCK+3}], s38 offen offset:512')
    def emitPFT(half):
        if half == 0 or 'T2only' in FXE:
            sh, nc, nw = (7, 32, 8) if 'S128' in FXE else (6, 64, 16)
            p(f'v_lshrrev_b32 v26, 3, v{vL}'); p(f'v_lshlrev_b32 v26, {sh}, v26'); p(f'v_and_b32 v27, 7, v{vL}'); p('v_lshl_add_u32 v26, v27, 10, v26')
            p(f'v_lshlrev_b32 v27, {sh}, v{vL}'); p('v_mov_b32 v18, 0x7fffff00'); p(f'v_cmp_gt_u32 vcc, {nw}, v{vL}'); p('v_cndmask_b32 v27, v18, v27, vcc')
            if nc < 64: p(f'v_cmp_gt_u32 vcc, {nc}, v{vL}'); p('v_cndmask_b32 v26, v18, v26, vcc')
        p('s_lshr_b32 s40, s2, 3')
        p(f's_lshl_b32 s39, s{sWave}, 5'); p('s_add_u32 s39, s39, s40'); p(f's_add_u32 s39, s39, {256*half}'); p('s_lshl_b32 s39, s39, 13')
        p('s_and_b32 s41, s2, 7'); p('s_lshl_b32 s41, s41, 10'); p('s_add_u32 s41, s41, s39')
        p('s_lshl_b32 s38, s40, 16'); p(f's_lshl_b32 s39, s{sWave}, 13'); p('s_add_u32 s38, s38, s39')
        p(f'buffer_load_dword v3, v26, s[{SCK}:{SCK+3}], s38 offen offset:{512*half}')
        p(f'buffer_load_dword v3, v27, s[{SUK}:{SUK+3}], s41 offen'); p(f'buffer_load_dword v3, v27, s[{SUV}:{SUV+3}], s41 offen')
    if PF and 'PF1top' in FXE: emitPF1()
    if 'PF0' in FXE:
        p(f'v_lshlrev_b32 v26, 7, v{vL}')
        p(f's_cmp_eq_u32 s{sWave}, 0'); p('s_cbranch_scc0 PZ1'); p('s_lshl_b32 s38, s2, 13'); p(f'buffer_load_dword v3, v26, s[{SCK}:{SCK+3}], s38 offen'); p.label('PZ1')
        p(f's_lshl_b32 s38, s2, 14'); p(f's_and_b32 s39, s{sWave}, 1'); p('s_lshl_b32 s39, s39, 13'); p('s_add_u32 s38, s38, s39'); p(f's_lshr_b32 s39, s{sWave}, 1')
        p('s_cmp_eq_u32 s39, 1'); p('s_cbranch_scc0 PZ2'); p(f'buffer_load_dword v3, v26, s[{SUK}:{SUK+3}], s38 offen'); p.label('PZ2')
        p('s_cmp_eq_u32 s39, 2'); p('s_cbranch_scc0 PZ3'); p(f'buffer_load_dword v3, v26, s[{SUV}:{SUV+3}], s38 offen'); p.label('PZ3')
    p(f's_lshl_b32 s38, s{sH}, 8'); p(f's_lshl_b32 s39, s{sWave}, 16'); p(f's_add_u32 s{sWoff}, s38, s39')
    p(f's_lshl_b32 s38, s{sI}, 18'); p(f's_lshl_b32 s39, s{sWave}, 15'); p(f's_add_u32 s{sCoff}, s38, s39')
    p(f's_lshl_b32 s{sT}, s{sWave}, 11')
    sW1 = 99; sGUd = 58
    p(f's_lshl_b32 s38, s{sH}, 8'); p(f's_lshl_b32 s39, s{sWave}, 15'); p(f's_add_u32 s{sW1}, s38, s39')
    SWQ = SA
    def itemsW(g):
        srdn = SUK if g < 8 else (SUV if g < 16 else SWQ)
        return [([f's_add_u32 m0, s{sT}, {(g % 4) * 16384}', f's_add_u32 s38, s{sWoff}, {(g % 8) * 64 * 8192}'],
                 f'buffer_load_dwordx4 v{vWD+tt}, s[{srdn}:{srdn+3}], s38 offen offset:{tt*1024} lds', f'W{g}') for tt in range(2)]
    def items1(g):
        b = SLOT1(g)
        it = [([f's_add_u32 m0, s{sCl}, {b}', f's_add_u32 s38, s{sCoff}, {g * 64}'],
               f'buffer_load_dwordx4 v{vCD+t}, s[{SCK}:{SCK+3}], s38 offen offset:{t*1024} lds', f'H{g}') for t in range(2)]
        for part, srdn in ((0, SUK), (1, SUV)):
            it.append(([f's_lshr_b32 s39, s{sCl}, 1', f's_add_u32 m0, s39, {b + 16384 + part * 8192}', f's_add_u32 s38, s{sW1}, {g * 32 * 8192}'],
                       f'buffer_load_dwordx4 v{vWD}, s[{srdn}:{srdn+3}], s38 offen lds', f'H{g}'))
        return it
    def emit_items(items):
        for pre, ins, tok in items:
            for x in pre: p(x)
            p(ins, tokdef=tok)
    def dmaW(g): emit_items(itemsW(g))
    sXv = 97
    p(f's_getreg_b32 s{sXv}, hwreg(HW_REG_XCC_ID, 0, 4)')
    p('v_mov_b32 v22, 0'); p('v_mov_b32 v23, 0')
    X = 64
    p(f's_lshl_b32 s40, s2, 3'); p(f's_add_u32 s40, s40, s{sWave}'); p(f's_lshl_b32 s41, s40, 10')
    p(f'buffer_load_dwordx4 {vr(X,4)}, v{vL16}, s[{SX}:{SX+3}], s41 offen')
    if PF and 'PFT' in FXE and 'T2only' not in FXE: emitPFT(0)
    emit_items(items1(0))
    if PF and 'PF1mid' in FXE: emitPF1()
    gu_items = []; gu_fill = []
    G = 96
    p('s_lshr_b32 s42, s2, 3'); p('s_and_b32 s43, s2, 7'); p('s_lshl_b32 s43, s43, 6')
    p('s_mul_i32 s44, s42, 3'); p('s_lshl_b32 s45, s42, 1'); p('s_add_u32 s45, s45, 22'); p('s_cmp_lt_u32 s42, 22'); p('s_cselect_b32 s44, s44, s45')
    p('s_lshl_b32 s45, s42, 9'); p('s_add_u32 s45, s45, s43'); p('s_mul_i32 s45, s45, 192'); p(f's_add_u32 s45, s45, {WS_GU}')
    p('s_mov_b32 s46, 43691')
    for j in range(2):
        b = G + 16 * j
        p(f's_lshl_b32 s38, s{sWave}, 6'); p(f's_add_u32 s38, s38, {512*j}'); p(f'v_add_u32 v{b}, s38, v{vL}')
        p(f'v_mul_lo_u32 v{b+1}, v{b}, s46'); p(f'v_lshrrev_b32 v{b+1}, 19, v{b+1}')
        p(f'v_mul_u32_u24 v{b+2}, 12, v{b+1}'); p(f'v_sub_u32 v{b+2}, v{b}, v{b+2}')
        p(f'v_add_u32 v{b+1}, s43, v{b+1}'); p(f'v_mul_u32_u24 v{b+1}, 2752, v{b+1}')
        p(f'v_lshrrev_b32 v{b+3}, 2, v{b+2}'); p(f'v_add_u32 v{b+3}, s44, v{b+3}'); p(f'v_lshlrev_b32 v{b+3}, 5, v{b+3}')
        p(f'v_and_b32 v{b+4}, 1, v{b+2}'); p(f'v_lshlrev_b32 v{b+4}, 4, v{b+4}')
        p(f'v_add3_u32 v{b+1}, v{b+1}, v{b+3}, v{b+4}')
        p(f'v_mov_b32 v{b+5}, 0x7fffff00')
        p(f'v_cmp_gt_u32 vcc, 768, v{b}'); p(f'v_cndmask_b32 v{b+1}, v{b+5}, v{b+1}, vcc')
        p(f'v_lshlrev_b32 v{b}, 4, v{b}'); p(f'v_cndmask_b32 v{b}, v{b+5}, v{b}, vcc')
        p(f'v_and_b32 v{b+2}, 2, v{b+2}'); p(f'v_cmp_eq_u32 vcc, 0, v{b+2}')
        p(f'v_cndmask_b32 v{b+3}, v{b+5}, v{b+1}, vcc'); p(f'v_cndmask_b32 v{b+4}, v{b+1}, v{b+5}, vcc')
        gu_items.append(([], f'buffer_load_dwordx4 {vr(b+8,4)}, v{b+3}, s[{SG}:{SG+3}], 0 offen', None))
        gu_items.append(([], f'buffer_load_dwordx4 {vr(b+12,4)}, v{b+4}, s[{SU}:{SU+3}], 0 offen', None))
    early = []
    def wave_sum_i(v, t):
        nonlocal early
        for rr in (8, 4, 2, 1):
            p(f'v_add_f32_dpp v{v}, v{v}, v{v} row_ror:{rr} row_mask:0xf bank_mask:0xf')
        p(f'v_mov_b32 v{t}, v{v}'); p(f'v_permlane16_swap_b32 v{v}, v{t}'); p(f'v_add_f32 v{v}, v{v}, v{t}')
        p(f'v_mov_b32 v{t}, v{v}'); p(f'v_permlane32_swap_b32 v{v}, v{t}'); p(f'v_add_f32 v{v}, v{v}, v{t}')
    F = 72
    for j in range(4):
        p(f'v_lshlrev_b32 v{F+2*j}, 16, v{X+j}'); p(f'v_and_b32 v{F+2*j+1}, 0xffff0000, v{X+j}')
    st(p, 47, 29)
    p(f'v_add_f32 v{t0}, v{F}, v{F+1}')
    for j in range(2, 8): p(f'v_add_f32 v{t0}, v{t0}, v{F+j}')
    wave_sum_i(t0, t1)
    p(f'v_mul_f32 v{t0}, 0x{f2u(1/512):08x}, v{t0}')
    for j in range(8): p(f'v_sub_f32 v{F+j}, v{F+j}, v{t0}')
    p(f'v_mul_f32 v{t2}, v{F}, v{F}')
    for j in range(1, 8): p(f'v_fmac_f32 v{t2}, v{F+j}, v{F+j}')
    wave_sum_i(t2, t1)
    p(f'v_mov_b32 v{t3}, 0x{f2u(1e-5):08x}')
    p(f'v_fmac_f32 v{t3}, 0x{f2u(1/512):08x}, v{t2}')
    p(f'v_rsq_f32 v{t3}, v{t3}')
    for j in range(8): p(f'v_mul_f32 v{F+j}, v{F+j}, v{t3}')
    for j in range(4): p(f'v_cvt_pk_bf16_f32 v{X+j}, v{F+2*j}, v{F+2*j+1}')
    p(f'v_lshlrev_b32 v{t0}, 7, v{vL}'); p(f's_lshl_b32 s38, s{sWave}, 4'); p('s_add_u32 s38, s38, 98304'); p(f'v_add_u32 v{t0}, s38, v{t0}')
    p(f'ds_write_b128 v{t0}, {vr(X,4)}')
    if 'oldstart' in FXE: emit_items(gu_items); gu_items = []
    emit_items(items1(1))
    if PF and 'PF1late' in FXE: emitPF1()
    if PF and 'PFT' in FXE: emitPFT(1)
    if 'oldstart' in FXE or 'h2early' in FXE: emit_items(items1(2))
    p(f's_mov_b32 s{sGUd}, s45')
    for j in range(2):
        b = G + 16 * j
        gu_fill += [f'v_or_b32 v{b+8+q}, v{b+8+q}, v{b+12+q}' for q in range(4)]
        gu_fill.append(f'buffer_store_dwordx4 {vr(b+8,4)}, v{b}, s[{WS}:{WS+3}], s{sGUd} offen{SC1}')
    p(f'v_mov_b32 v{t1}, 0x7fffff00'); p(f's_lshl_b32 s40, s2, 7'); p(f's_add_u32 s40, s40, {WS_CNT}'); p(f'v_mov_b32 v{t2}, s40')
    p('s_cmp_lt_u32 s2, 192'); p('s_cselect_b32 s41, 1, 0'); p(f'v_cmp_gt_u32 vcc, s41, v0'); p(f'v_cndmask_b32 v{t2}, v{t1}, v{t2}, vcc')
    p(f'v_mov_b32 v{t3}, 0'); p(f'buffer_store_dword v{t3}, v{t2}, s[{WS}:{WS+3}], 0 offen{SC1}')
    srd(p, SWQ, 8, 0, 512*4096*2)
    p(f'v_lshlrev_b32 v26, 6, v{vL}')
    p(f'v_lshrrev_b32 v27, 4, v{vL}'); p('v_lshlrev_b32 v27, 13, v27'); p(f'v_and_b32 v30, 15, v{vL}'); p('v_lshlrev_b32 v30, 6, v30'); p('v_add_u32 v27, v27, v30')
    def itemsPFc():
        return [(['s_lshr_b32 s38, s2, 3', 's_lshl_b32 s38, s38, 16', f's_lshl_b32 s39, s{sWave}, 13', 's_add_u32 s38, s38, s39'],
                 f'buffer_load_dword v3, v26, s[{SCK}:{SCK+3}], s38 offen', None)]
    def itemsPFx():
        return [([f's_lshl_b32 s38, s{sR32}, 15', f's_and_b32 s39, s{sH}, 3', 's_lshl_b32 s39, s39, 13', 's_add_u32 s38, s38, s39', f's_add_u32 s38, s38, {WS_XN + k * 4096}'],
                 f'buffer_load_dword v3, v26, s[{WS}:{WS+3}], s38 offen sc1', None) for k in range(2)]
    def itemsPFw(srdn, grp):
        return [(['s_lshr_b32 s38, s2, 3', 's_lshl_b32 s38, s38, 4', f's_and_b32 s39, s{sWave}, 3', 's_lshl_b32 s39, s39, 2', 's_add_u32 s38, s38, s39', 's_lshl_b32 s38, s38, 13',
                  's_and_b32 s39, s2, 7', 's_lshl_b32 s39, s39, 10', 's_add_u32 s38, s38, s39'],
                 f'buffer_load_dword v3, v27, s[{srdn}:{srdn+3}], s38 offen', None)]
    p(f's_mov_b32 s{sOOB}, 0x80000000')
    st(p, 0, t0)
    sG0, sGoff, sGl, sHoff = 40, 41, 42, 43
    p('s_sub_u32 s44, 15, s%d' % sI); p(f's_cmp_lt_u32 s{sWave}, 4'); p(f's_cselect_b32 s45, s{sI}, s44')
    p(f's_and_b32 s46, s{sWave}, 3'); p('s_lshl_b32 s38, s45, 2'); p(f's_add_u32 s{sR32}, s38, s46')
    p('s_lshl_b32 s38, s45, 1'); p(f's_add_u32 s{sNTw}, s38, 2')
    if 'noskip' not in FXE:
        p('s_cmp_lt_u32 s46, 2'); p('s_cselect_b32 s39, 1, 0'); p('s_cmp_eq_u32 s45, 0'); p('s_cselect_b32 s39, 0, s39'); p(f's_sub_u32 s{sNTw}, s{sNTw}, s39')
    p('s_lshl_b32 s38, s44, 1'); p(f's_add_u32 s{sNT}, s38, 2')
    p(f's_mul_i32 s38, s{sH}, {512*192}'); p(f's_mul_i32 s39, s{sWave}, 3072'); p(f's_add_u32 s{sGoff}, s38, s39'); p(f's_add_u32 s{sGoff}, s{sGoff}, {WS_GU}'); p(f's_add_u32 s{sGl}, s39, 65536')
    p(f's_mul_i32 s38, s{sH}, 3'); p(f's_lshl_b32 s39, s{sH}, 1'); p('s_add_u32 s39, s39, 22'); p(f's_cmp_lt_u32 s{sH}, 22'); p(f's_cselect_b32 s{sG0}, s38, s39')
    p(f's_mul_i32 s38, s{sR32}, {NKS}'); p(f's_lshl_b32 s39, s{sH}, 3'); p('s_add_u32 s39, s38, s39'); p(f's_lshl_b32 s{sCtxOff}, s39, 10'); p(f's_add_u32 s{sCtxOff}, s{sCtxOff}, {WS_AF}')
    p(f's_add_u32 s38, s38, s{sG0}'); p('s_add_u32 s38, s38, 256'); p(f's_lshl_b32 s{sHoff}, s38, 10'); p(f's_add_u32 s{sHoff}, s{sHoff}, {WS_AF}')
    p(f's_lshl_b32 s38, s{sH}, 19'); p('s_lshl_b32 s39, s46, 12'); p('s_add_u32 s38, s38, s39')
    p(f's_add_u32 s{sKbase}, s38, {WS_KF}'); p(f's_add_u32 s{sVbase}, s38, {WS_VF}')
    p(f's_mov_b32 s{sKdl}, s39'); p(f's_add_u32 s{sVdl}, s39, {LDS_V}') if False else None
    p(f's_mov_b32 s44, s39')
    p(f's_lshl_b32 s38, s{sH}, 6'); p(f's_lshl_b32 s39, s{sI}, 3'); p('s_add_u32 s38, s38, s39'); p(f's_add_u32 s38, s38, s{sWave}')
    p(f's_lshl_b32 s{sOut}, s38, 13')
    def itemsG(c):
        return [([f's_add_u32 m0, s{sGl}, {c * 24576}', f's_add_u32 s38, s{sGoff}, {c * 24576}'],
                 f'buffer_load_dwordx4 v{vL16}, s[{WS}:{WS+3}], s38 offen offset:{j*1024} sc1 lds', f'G{c}') for j in range(3)]
    def itemsX(c):
        return [([f's_lshl_b32 s38, s{sR32}, 15', f's_add_u32 s38, s38, {WS_XN + c*4096}'],
                 f'buffer_load_dwordx4 {ar(4*(4*c+s),4)}, v{vL16}, s[{WS}:{WS+3}], s38 offen offset:{s*1024} sc1', f'XL{c}') for s in range(4)]
    PDW = 4
    NM = 24 * 16
    def wread(m):
        g, r = divmod(m, 16); s, n = divmod(r, 4)
        b = WF + 4 * (m % 8); off = (g % 4) * 16384 + s * 4096
        p(f'ds_read_b64_tr_b16 {vr(b,2)}, v{vW+n} offset:{off}')
        p(f'ds_read_b64_tr_b16 {vr(b+2,2)}, v{vW+n} offset:{off+1024}')
    def cread(c):
        for s in range(4): p(f'ds_read_b128 {ar(4*(4*c+s),4)}, v{vCR+s} offset:{(c % 3) * 4096}')
    def epi(part):
        for n in range(4):
            a = ACC + 16 * n
            for j in range(8): p(f'v_cvt_pk_bf16_f32 v{a+j}, v{a+2*j}, v{a+2*j+1}')
        def stores(fl):
            base = WS_KF if part == 0 else WS_VF
            for hi in range(2):
                p(f's_add_u32 s38, s{sOut}, {base + hi * 4096}')
                for q in range(4):
                    o = hi * 4 + q
                    if part == 0: n, half = o // 2, o % 2
                    else: half, n = o // 4, o % 4
                    p(f'buffer_store_dwordx4 {vr(ACC+16*n+4*half,4)}, v{vL16}, s[{WS}:{WS+3}], s38 offen offset:{q*1024}{fl}')
        dual(stores)
    vP, vPz = 22, 23
    def s1_arrive():
        p(f'v_mbcnt_lo_u32_b32 v{t0}, -1, 0'); p(f'v_mbcnt_hi_u32_b32 v{t0}, -1, v{t0}')
        p(f'v_cmp_eq_u32 vcc, 0, v{t0}'); p(f'v_mov_b32 v{t1}, 0x7fffff00'); p(f'v_cndmask_b32 v{t0}, v{t1}, v{t0}, vcc')
        p(f's_or_b32 s38, s{sXv}, 0x80'); p(f'v_mov_b32 v{t1}, s38')
        p(f'buffer_store_byte v{t1}, v{t0}, s[{DBG}:{DBG+3}], s2 offen sc1')
    def s1_issue():
        p(f'v_lshlrev_b32 v{vPz}, 2, v{vL}')
        p(f'buffer_load_dword v{vP}, v{vPz}, s[{DBG}:{DBG+3}], 0 offen sc1')
    def s1_test(L):
        p(f'v_and_b32 v{t0}, 0x80808080, v{vP}'); p(f'v_mov_b32 v{t1}, 0x80808080')
        p(f'v_cmp_ne_u32 vcc, v{t0}, v{t1}')
        p(f's_cmp_eq_u64 vcc, 0')
    def s1_check():
        lab[0] += 1; L = f'S1c{lab[0]}'
        s1_test(L); p(f's_cbranch_scc1 {L}_ok')
        p('s_mov_b32 s95, 0')
        p.label(f'{L}_sp')
        s1_issue(); s1_test(L); p(f's_cbranch_scc1 {L}_ok')
        p('s_add_u32 s95, s95, 1'); p(f's_cmp_lt_u32 s95, {SPIN_LIMIT}'); p(f's_cbranch_scc1 {L}_sp')
        p.label(f'{L}_ok')
        p('s_and_b32 s38, s2, 3'); p('s_lshl_b32 s38, s38, 3')
        p(f'v_lshrrev_b32 v{t0}, s38, v{vP}'); p(f'v_and_b32 v{t0}, 0x7f, v{t0}')
        p('s_bfe_u32 s39, s2, 0x10002')
        p(f'v_and_b32 v{t1}, 1, v{vL}'); p(f'v_cmp_eq_u32 s[94:95], s39, v{t1}')
        p(f'v_cmp_ne_u32 vcc, s{sXv}, v{t0}')
        p('s_and_b64 vcc, vcc, s[94:95]')
        p('s_cmp_eq_u64 vcc, 0'); p(f's_cselect_b32 s{sFast}, 1, 0')
        if FORCE: p(f's_mov_b32 s{sFast}, {1 if FORCE == "fast" else 0}')
    def dual(fn, kind='kv'):
        if ('slow' + kind) in FXE:
            fn(' sc1'); return
        lab[0] += 1; L = f'DU{lab[0]}'
        p(f's_cmp_eq_u32 s{sFast}, 0'); p(f's_cbranch_scc1 {L}s'); fn(''); p(f's_branch {L}j'); p.label(f'{L}s'); fn(' sc1'); p.label(f'{L}j')
    def itemsKV(which, t, tok):
        if which == 'K': pre = [f's_add_u32 m0, s44, {t*KSLOT}', f's_add_u32 s38, s{sKbase}, {t*16384}']
        else: pre = [f's_add_u32 m0, s44, {LDS_V + t*VSLOT}', f's_add_u32 s38, s{sVbase}, {t*16384}']
        return [(pre, f'buffer_load_dwordx4 v{vL16}, s[{WS}:{WS+3}], s38 offen offset:{j*1024} sc1 lds', tok) for j in range(4)]
    class VQ:
        def __init__(self, grp):
            self.q = []; self.par = 0 if grp == 'A' else 1; self.now = 0
            self.delay = int(os.environ.get('DLY', 6)) if grp == 'B' else 0
        def add(self, items, front=False, nodelay=False):
            items = [(it, self.now + (0 if nodelay else self.delay)) for it in items]
            if front: self.q = items + self.q
            else: self.q += items
        def slot(self, n):
            self.now += 1
            if n % 2 == self.par:
                for k, (it, t) in enumerate(self.q):
                    if t <= self.now:
                        emit_items([it]); self.q.pop(k); break
        def flush(self):
            emit_items([it for it, t in self.q]); self.q = []
    sCn = 45
    p(f's_lshl_b32 s{sCn}, s{sH}, 7'); p(f's_add_u32 s{sCn}, s{sCn}, {CNT_S2}')
    sS, sRB, sCT, sQ0, sWo = 48, 49, 50, 51, 52
    SO, SDn = SC, SD
    SLOT3 = [114688, 131072, 147456, 98304]
    v3W, v3D = 4, 8
    def itemsW3(g, wv, tok=True):
        pre = [f's_add_u32 m0, s{wv}, {SLOT3[g % 4]}', f's_lshl_b32 s39, s{wv}, 2', f's_add_u32 s39, s39, s{sWo}']
        if g >= 3: pre += [f's_lshl_b32 s38, s{sS}, 19', f's_add_u32 s38, s38, {(g - 3) << 16}']; srdn = SO
        else: pre += [f's_lshl_b32 s38, s{sQ0}, 14', f's_add_u32 s38, s38, {g << 16}']; srdn = SDn
        pre += ['s_add_u32 s38, s38, s39']
        return [(pre, f'buffer_load_dwordx4 v{v3D+tt}, s[{srdn}:{srdn+3}], s38 offen offset:{tt*1024} lds', f'X{g}' if tok else None) for tt in range(2)]
    def dmaW3(g, wv, tok=True): emit_items(itemsW3(g, wv, tok))
    def code_pf_att(grp):
        lab[0] += 1; L = f'CP{lab[0]}'
        p(f's_and_b32 s38, s{sWave}, 3'); p('s_cmp_lg_u32 s38, 0'); p(f's_cbranch_scc1 {L}')
        code_pf(f'ATT_{grp}', f'ATT_{grp}_end', 26, 3, 2)
        p.label(L)
    def phase12(grp):
        vq = VQ(grp)
        def w0(fn):
            if grp == 'A': only('w0', fn)
        p('s_waitcnt lgkmcnt(0)')
        p.waittok('H0'); p('s_barrier')
        p(f's_lshl_b32 s38, s{sWave}, 10'); p('s_add_u32 s38, s38, 98304'); p(f'v_add_u32 v{t0}, s38, v{vL16}')
        p(f'ds_read_b128 v[28:31], v{t0}')
        p(f'v_lshrrev_b32 v{t0}, 3, v{vL}'); p(f'v_lshlrev_b32 v{t0}, 9, v{t0}'); p(f'v_and_b32 v{t1}, 7, v{vL}'); p(f'v_lshl_add_u32 v{t0}, v{t1}, 4, v{t0}')
        p('s_lshr_b32 s38, s2, 2'); p('s_lshl_b32 s38, s38, 15'); p('s_and_b32 s39, s2, 3'); p('s_lshl_b32 s39, s39, 7'); p('s_add_u32 s38, s38, s39')
        p(f's_lshl_b32 s39, s{sWave}, 12'); p('s_add_u32 s38, s38, s39'); p(f's_add_u32 s38, s38, {WS_XN}')
        p(f'buffer_store_dwordx4 v[28:31], v{t0}, s[{WS}:{WS+3}], s38 offen{SC1}', tokdef='LNST')
        st(p, 13, t0)
        vq.add([] if ('oldstart' in FXE or 'h2early' in FXE) else items1(2), nodelay=True); vq.add(gu_items, nodelay=True); vq.add(items1(3), nodelay=True)
        gfill = list(gu_fill)
        if PF and 'PFc' in FXE: vq.add(itemsPFc())
        CF, WF1 = 32, 48
        def cread1(g):
            for q in range(2): p(f'ds_read_b128 {vr(CF + 8*(g%2) + 4*q, 4)}, v{vCR+q}')
        def wread1(m):
            g, r = divmod(m, 16); q, part, n = r >> 3, (r >> 2) & 1, r & 3
            b = WF1 + 4 * (m % 8); off = part * 8192 + q * 4096
            if 'x1nords' in FXE and m >= 16: return
            p(f'ds_read_b64_tr_b16 {vr(b,2)}, v{vW1+n} offset:{off}')
            p(f'ds_read_b64_tr_b16 {vr(b+2,2)}, v{vW1+n} offset:{off+1024}')
        cread1(0)
        for m in range(PDW): wread1(m)
        vG = 24
        p(f'v_lshrrev_b32 v{t0}, 5, v{vL}'); p(f'v_lshlrev_b32 v{t0}, 3, v{t0}'); p(f'v_bfe_u32 v{t1}, v{vL}, 2, 2'); p(f'v_add_u32 v{t0}, v{t0}, v{t1}')
        p(f'v_mul_u32_u24 v{t0}, 192, v{t0}')
        p(f'v_bfe_u32 v{t1}, v{vL}, 4, 1'); p(f'v_lshlrev_b32 v{t1}, 5, v{t1}'); p(f'v_add_u32 v{t0}, v{t0}, v{t1}')
        p(f'v_and_b32 v{t1}, 3, v{vL}'); p(f'v_lshlrev_b32 v{t1}, 3, v{t1}'); p(f'v_add_u32 v{t0}, v{t0}, v{t1}')
        p(f'v_add_u32 v{vG}, 65536, v{t0}'); p(f'v_add_u32 v{vG+1}, {65536+49152}, v{t0}')
        def vadd(reg, d):
            p(f'v_add_u32 v{reg}, 0x{d & 0xffffffff:x}, v{reg}')
        for g in range(16):
            for r in range(16):
                m = g * 16 + r; q, part, n = r >> 3, (r >> 2) & 1, r & 3
                a = ar(64 * part + 16 * n, 16); wf = vr(WF1 + 4 * (m % 8), 4); cf = vr(CF + 8 * (g % 2) + 4 * q, 4)
                cin = a if not (g == 0 and q == 0) else '0'
                if part == 1: p(f'v_mfma_f32_32x32x16_bf16 {a}, {cf}, {wf}, {cin}')
                else: p(f'v_mfma_f32_32x32x16_bf16 {a}, {wf}, {cf}, {cin}')
                if r == 11 and g < 15:
                    toks = [f'H{g+1}'] + (['LNST'] if g == 3 else [])
                    if 'x1novm' in FXE: toks = ['LNST'] if g == 3 else []
                    if toks: p.waittok(*toks)
                    if 'x1nobar' not in FXE or g == 3: p('s_barrier')
                    d = SLOT1(g + 1) - SLOT1(g)
                    for q2 in range(2): vadd(vCR + q2, d)
                    cread1(g + 1)
                    if g == 3: w0(s1_arrive)
                if m + PDW < 256 and not (r >= 12 and False):
                    if r == 12 and g < 15:
                        for n2 in range(4): vadd(vW1 + n2, SLOT1(g + 1) - SLOT1(g))
                    wread1(m + PDW)
                if r == 12:
                    if g + 4 < 16 and 'x1novm' not in FXE: vq.add(items1(g + 4))
                    if g == 12: vq.add(itemsW(16) + itemsW(17))
                    if g == 13: vq.add(itemsW(18))
                    if PF and g == 6 and grp == 'B' and 'noPFq' not in FXE: vq.add(itemsPFw(SWQ, grp))
                    if PF and g == 0 and 'noPFuk' not in FXE: vq.add(itemsPFw(SUK if grp == 'A' else SUV, grp))
                    if g == 8: s1_issue()
                    if g == 9: s1_check()
                    if PF and g == 10 and 'noPFx' not in FXE: vq.add(itemsPFx())
                if g == 2 and gfill and r >= 2:
                    x = gfill.pop(0); p(x, tokdef='LNST' if x.startswith('buffer_store') else None)
                vq.slot(m)
            if 'chst' in os.environ.get('FX', ''): st(p, 16 + g, t0)
        vq.flush()
        def epi_half(t, half, T, P_):
            part, n = divmod(t, 4)
            ops = [f'v_accvgpr_read_b32 v{T+j2}, a{16*t+8*half+j2}' for j2 in range(8)]
            ops += [f'v_cvt_pk_bf16_f32 v{P_+j2}, v{T+2*j2}, v{T+2*j2+1}' for j2 in range(4)]
            def stores(fl):
                o = ((2*n + half) if part == 0 else (half * 4 + n)) * 1024
                p(f's_add_u32 s38, s{sOut}, {(WS_KF if part == 0 else WS_VF) + (o & ~4095)}')
                p(f'buffer_store_dwordx4 {vr(P_,4)}, v{vL16}, s[{WS}:{WS+3}], s38 offen offset:{o & 4095}{fl}', tokdef='KVST')
            return ops, stores
        for t in range(3):
            for half in range(2):
                ops, stores = epi_half(t, half, 80 + 8 * ((2*t+half) % 4), 112 + 4 * ((2*t+half) % 4))
                for x in ops: p(x)
                dual(stores)
            emit_items(itemsX(t))
        fill = []
        for t in range(3, 8):
            for half in range(2):
                ops, stores = epi_half(t, half, 10, 28)
                fill += ops + [('st', stores)]
            fill += [('x', t)]
        def filler(k):
            for _ in range(k):
                if not fill: return
                f = fill.pop(0)
                if isinstance(f, tuple):
                    if f[0] == 'st': dual(f[1])
                    else: vq.add(itemsX(f[1]), nodelay=True)
                else: p(f)
        st(p, 2, t0); stamp_real(p, 43, sWave, t0)
        p.waittok('W16'); p('s_barrier')
        for m in range(256, 256 + PDW): wread(m)
        for g in range(16, 24):
            c = g - 16
            assert not any(it[2] == f'XL{c}' for it, t in vq.q), ('XL', c)
            for r in range(16):
                m = g * 16 + r; s, n = divmod(r, 4)
                a = vr(ACC + 16 * n, 16); wf = vr(WF + 4 * (m % 8), 4); cf = ar(4 * (4 * c + s), 4)
                cin = a if not (c == 0 and s == 0) else '0'
                p(f'v_mfma_f32_32x32x16_bf16 {a}, {wf}, {cf}, {cin}')
                if r == 16 - PDW - 1:
                    toks = [f'W{g+1}'] if g < 23 else ['G0', 'G1', 'G2', 'G3']
                    if g == 21:
                        assert not fill
                        toks.append('KVST')
                    p.waittok(*toks); p('s_barrier')
                    if g == 21: w0(lambda: sy.arrive(WS, f's{sCn}', t0, t1))
                if m + PDW < NM: wread(m + PDW)
                if r == 16 - PDW:
                    if g + 3 < 24: vq.add(itemsW(g + 3), front=True)
                    if g == 23: w0(lambda: sy.poll_issue(WS, f's{sCn}', vP, vPz))
                    if g == 22: code_pf_att(grp)
                    if g in (19, 20): vq.add(itemsG(g - 19))
                    if g == 21: vq.add(itemsG(2) + itemsG(3))
                filler(2)
                vq.slot(m)
            if 'chst' in os.environ.get('FX', ''): st(p, 16 + g, t0)
        QP = [104, 108, 120, 124, 96, 100, 112, 116]
        for n in (2, 3, 0, 1):
            a = ACC + 16 * n
            for j in range(16): p(f'v_mul_f32 v{a+j}, 0x{f2u(QSCALE):08x}, v{a+j}')
            for j in range(8): p(f'v_cvt_pk_bf16_f32 v{QP[2*n] + j}, v{a+2*j}, v{a+2*j+1}')
        st(p, 3, t0)
        GA = [64, 80, 0]
        GA[2] = 4
        def gread(m, nt):
            per = 8 * nt; c, r = divmod(m, per); s, t = divmod(r, nt)
            b = WF + 4 * (m % 8); off = (c % 2) * 24576 + s * 3072 + t * 64; a = vG + c // 2
            p(f'ds_read_b64_tr_b16 {vr(b,2)}, v{a} offset:{off}')
            p(f'ds_read_b64_tr_b16 {vr(b+2,2)}, v{a} offset:{off+768}')
        def gu(nt):
            per = 8 * nt; tot = 4 * per
            vq.q = list(pend)
            for m in range(PDW): gread(m, nt)
            for m in range(tot):
                c, r = divmod(m, per); s, t = divmod(r, nt)
                a = vr(GA[t], 16); wf = vr(WF + 4 * (m % 8), 4); xf = ar(4 * (8 * c + s), 4)
                cin = a if not (c == 0 and s == 0) else '0'
                p(f'v_mfma_f32_32x32x16_bf16 {a}, {wf}, {xf}, {cin}')
                if m == 6: w0(lambda: sy.poll_check(WS, f's{sCn}', vP, vPz, 8))
                if r == per - PDW - 1 and c < 2: p('s_barrier')
                if m + PDW < tot: gread(m + PDW, nt)
                if r == per - PDW and c == 0 and grp == 'A': vq.add(itemsKV('K', 0, 'K0') + itemsKV('K', 1, 'K1') + itemsKV('V', 0, 'V0') + itemsKV('K', 2, 'K2'))
                if r == per - PDW and c == 1 and grp == 'A': vq.add(itemsKV('V', 1, 'V1'))
                vq.slot(m)
            vq.flush()
            for t in range(nt):
                a = GA[t]
                for j in range(8):
                    T = WF + 4 * (j % 4)
                    p(f'v_mul_f32 v{T}, 0x{f2u(-1.4426950408889634):08x}, v{a+j}')
                    p(f'v_exp_f32 v{T}, v{T}')
                    p(f'v_mul_f32 v{T+1}, v{a+j}, v{a+8+j}')
                    p(f'v_add_f32 v{T}, 1.0, v{T}')
                    p(f'v_rcp_f32 v{T}, v{T}')
                    p(f'v_mul_f32 v{a+j}, v{T+1}, v{T}')
                for j in range(4): p(f'v_cvt_pk_bf16_f32 v{a+j}, v{a+2*j}, v{a+2*j+1}')
            def hst(fl):
                for t in range(nt): p(f'buffer_store_dwordx4 {vr(GA[t],4)}, v{vL16}, s[{WS}:{WS+3}], s{sHoff} offen offset:{t*1024}{fl}', tokdef='HST')
            dual(hst, 'h')
        pend = list(vq.q)
        p(f's_cmp_ge_u32 s{sH}, 22'); p(f's_cbranch_scc1 K2_gu2{grp}')
        gu(3); p(f's_branch K2_gud{grp}')
        p.label(f'K2_gu2{grp}'); gu(2)
        p.label(f'K2_gud{grp}')
        st(p, 4, t0); stamp_real(p, 40, sWave, t0)
        for s in range(8):
            for j in range(4): p(f'v_accvgpr_write_b32 a{AQ+4*s+j}, v{QP[s]+j}')
        p(f'v_mov_b32 v{VL16}, v{vL16}'); p(f'v_mov_b32 v{VDMA}, v{vL16}')
        p(f'v_and_b32 v3, 31, v{vL}'); p(f'v_lshrrev_b32 v4, 5, v{vL}'); p('v_lshlrev_b32 v4, 2, v4'); p('v_sub_u32 v3, v3, v4')
        p(f's_lshl_b32 s38, s{sR32}, 5'); p('v_add_u32 v3, s38, v3'); p('v_cvt_f32_i32 v3, v3'); p('v_add_f32 v3, 0.5, v3')
        p(f'v_mul_f32 v{VT}, 0x{f2u(BIG):08x}, v3')
        p(f'v_mov_b32 v{VK}, v{VL16}'); p(f'v_add_u32 v{VV}, {LDS_V}, v{VL16}')
        p(f's_mov_b32 s{sKdl}, s44'); p(f's_add_u32 s{sVdl}, s44, {LDS_V + 2*VSLOT}')
        p(f's_mov_b32 s{sKsl}, 0'); p(f's_mov_b32 s{sVsl}, {LDS_V}')
        p(f's_mov_b32 s{sThr}, 0x46800000'); p(f's_mov_b32 s{sOOB}, 0x80000000')
        p(f's_add_u32 s{sKbase}, s{sKbase}, {3*16384}'); p(f's_add_u32 s{sVbase}, s{sVbase}, {2*16384}')
        p(f's_mov_b32 s{sKt}, 3'); p(f's_mov_b32 s{sKdma}, s{sKbase}'); p(f's_mov_b32 s{sVdma}, s{sVbase}')
        p(f's_and_b32 s{sS}, s2, 7'); p(f's_lshr_b32 s{sRB}, s2, 5'); p(f's_lshr_b32 s{sCT}, s2, 3'); p(f's_and_b32 s{sCT}, s{sCT}, 3')
        p(f's_lshl_b32 s38, s{sS}, 2'); p('s_mul_i32 s39, s38, 3'); p('s_lshl_b32 s53, s38, 1'); p('s_add_u32 s53, s53, 22'); p('s_cmp_lt_u32 s38, 22'); p(f's_cselect_b32 s{sQ0}, s39, s53')
        p(f's_lshl_b32 s{sWo}, s{sCT}, 8')
        srd(p, SO, 14, 0, 4096*512*2); srd(p, SDn, 22, 0, 1376*512*2)
        wtr_addr_setup(p, v3W, vL, 12, 13, True)
        wdma_addr_setup(p, v3D, vL, 12, 13, 1024)
    G3 = {}
    p(f's_cmp_ge_u32 s{sWave}, 4'); p('s_cbranch_scc1 K2_B')
    phase12('A')
    p.label('ATT_A')
    def s3h_arrive():
        for expr in ([f's_lshr_b32 s55, s{sI}, 1'], [f's_sub_u32 s55, 15, s{sI}', 's_lshr_b32 s55, s55, 1']):
            for x in expr: p(x)
            p(f's_lshl_b32 s38, s{sS}, 3'); p('s_add_u32 s55, s55, s38'); p('s_lshl_b32 s55, s55, 7'); p(f's_add_u32 s55, s55, {CNT_S3H}')
            sy.arrive(WS, 's55', T0, T1)
    attention(p, True, 'A', tokwait=True, pre_tok='HST', post_init=lambda: only('w0', s3h_arrive))
    p(f's_sub_u32 s{sIt}, s{sNT}, s{sNTw}')
    dma_group(p); dma_advance(p)
    epilogue(p, lambda fn: dual(fn, 'c'))
    p('s_waitcnt vmcnt(16)'); p('s_barrier')
    dma_group(p); dma_advance(p)
    p(f's_lshl_b32 s53, s{sWave}, 11'); p('s_add_u32 s54, s53, 8192')
    for g in range(3):
        dmaW3(g, 53, tok=False); dmaW3(g, 54, tok=False)
    npf = 0
    if PF:
        p(f'v_lshlrev_b32 v{T2}, 6, v{vL}'); p('s_lshr_b32 s38, s2, 3'); p('s_lshl_b32 s39, s38, 14'); p(f's_lshl_b32 s55, s{sS}, 19'); p('s_add_u32 s39, s39, s55')
        p(f's_lshl_b32 s55, s{sWave}, 12'); p('s_add_u32 s39, s39, s55')
        p(f'buffer_load_dword v{T3}, v{T2}, s[{SO}:{SO+3}], s39 offen')
        p('s_mul_i32 s39, s38, 6144'); p(f's_lshl_b32 s55, s{sQ0}, 14'); p('s_add_u32 s39, s39, s55'); p(f's_and_b32 s55, s{sWave}, 1'); p('s_lshl_b32 s55, s55, 12'); p('s_add_u32 s39, s39, s55')
        p(f'buffer_load_dword v{T3}, v{T2}, s[{SDn}:{SDn+3}], s39 offen')
        npf = 2
    def s3h_wait():
        p(f's_lshl_b32 s38, s{sS}, 3'); p(f's_add_u32 s55, s{sRB}, s38'); p('s_lshl_b32 s55, s55, 7'); p(f's_add_u32 s55, s55, {CNT_S3H}')
        sy.spin(WS, 's55', T2, T3, 8)
    p(f's_waitcnt vmcnt({20 + npf})'); p('s_barrier')
    p(f's_lshr_b32 s55, s{sI}, 1'); p(f's_lshl_b32 s38, s{sS}, 3'); p('s_add_u32 s55, s55, s38'); p('s_lshl_b32 s55, s55, 7'); p(f's_add_u32 s55, s55, {CNT_S3}')
    only('w3', lambda: sy.arrive(WS, 's55', T0, T1))
    if 'wbl2' in FXE:
        p(f's_cmp_lg_u32 s{sWave}, 3'); p('s_cbranch_scc1 NOWB'); p('buffer_wbl2 sc1'); p.label('NOWB')
    p(f's_sub_u32 s{sIt}, s{sIt}, 2'); p(f's_cmp_eq_u32 s{sIt}, 0'); p('s_cbranch_scc1 A_done')
    p.label('A_ld')
    dma_group(p); dma_advance(p)
    if 'noldw' not in FXE: p('s_waitcnt vmcnt(8)')
    p('s_barrier')
    p(f's_sub_u32 s{sIt}, s{sIt}, 1'); p(f's_cmp_lg_u32 s{sIt}, 0'); p('s_cbranch_scc1 A_ld')
    p.label('A_done')
    only('w0', s3h_wait)
    only('w0', lambda: code_pf('K3_start', 'K_code_end', 16, 18, 3))
    p('s_branch K3_start')
    p.label('ATT_A_end')
    rare_paths(p, 'A')
    p.label('K2_B')
    phase12('B')
    p.label('ATT_B')
    if 'noprio' not in FXE: p('s_setprio 2')
    attention(p, False, 'B', pre_tok='HST')
    if 'noprio' not in FXE: p('s_setprio 0')
    st(p, 5, 100); stamp_real(p, 41, sWave, 100)
    p(f's_cmp_eq_u32 s{sNTw}, s{sNT}'); p('s_cbranch_scc1 B_noxb'); p('s_barrier'); p.label('B_noxb')
    epilogue(p, lambda fn: dual(fn, 'c'))
    p('s_branch K3_start')
    p.label('ATT_B_end')
    rare_paths(p, 'B')
    p.label('K3_start')
    p('s_waitcnt vmcnt(0)'); p('s_barrier')
    st(p, 6, 100)
    sS3 = 44
    def s3():
        p(f's_sub_u32 s55, 15, s{sI}'); p('s_lshr_b32 s55, s55, 1'); p(f's_lshl_b32 s38, s{sS}, 3'); p('s_add_u32 s55, s55, s38'); p('s_lshl_b32 s55, s55, 7'); p(f's_add_u32 s55, s55, {CNT_S3}')
        sy.arrive(WS, 's55', 16, 17)
    only('w0', s3)
    p(f's_lshl_b32 s38, s{sS}, 3'); p(f's_add_u32 s{sS3}, s{sRB}, s38'); p(f's_lshl_b32 s{sS3}, s{sS3}, 7'); p(f's_add_u32 s{sS3}, s{sS3}, {CNT_S3}')
    sAoff, sT3, sR3, sAh = 53, 54, 64, 55
    p(f's_lshl_b32 s38, s{sRB}, 3'); p(f's_add_u32 s{sR3}, s38, s{sWave}'); p(f's_mul_i32 s38, s{sR3}, {NKS}')
    p(f's_lshl_b32 s39, s{sS}, 5'); p('s_add_u32 s39, s39, s38'); p(f's_lshl_b32 s{sAoff}, s39, 10'); p(f's_add_u32 s{sAoff}, s{sAoff}, {WS_AF}')
    p(f's_add_u32 s39, s38, s{sQ0}'); p('s_add_u32 s39, s39, 256'); p(f's_lshl_b32 s{sAh}, s39, 10'); p(f's_add_u32 s{sAh}, s{sAh}, {WS_AF}')
    p(f's_lshl_b32 s{sT3}, s{sWave}, 11')
    def itemsA(g):
        it = []
        for q in range(4):
            pre = [f's_add_u32 s38, s{sAoff}, {(g-3)*4096}'] if g >= 3 else [f's_add_u32 s38, s{sAh}, {g*4096}']
            if g == 2:
                pre += [f's_cmp_lt_u32 s{sS}, {5 if q >= 2 else 6}', f's_cselect_b32 s38, s38, s{sOOB}']
            it.append((pre, f'buffer_load_dwordx4 {ar(16*(g%4)+4*q,4)}, v{vL16}, s[{WS}:{WS+3}], s38 offen offset:{q*1024} sc1', f'AL{g}'))
        return it
    for c in range(3): emit_items(itemsA(c))
    st(p, 7, 100)
    NCH = 11
    for n in range(4): p(f'v_add_u32 v{v3W+n}, 98304, v{v3W+n}')
    TM = 'noTM' not in FXE
    def sn3(g, r):
        if TM and g == NCH - 1: n, s_ = divmod(r, 4); return s_, n
        return divmod(r, 4)
    def pt_base(reg):
        p(f's_lshl_b32 s38, s{sS}, 6'); p(f's_add_u32 s38, s38, s{sR3}'); p('s_lshl_b32 s38, s38, 4'); p(f's_lshl_b32 s39, s{sCT}, 2'); p('s_add_u32 s38, s38, s39'); p('s_lshl_b32 s38, s38, 11')
        p(f's_add_u32 {reg}, s38, {WS_PT}')
    def tile_ops(n, reg):
        a = ACC + 16 * n; ops = [f'v_cvt_pk_bf16_f32 v{a+j}, v{a+2*j}, v{a+2*j+1}' for j in range(8)]
        if n == 2: ops.append(f's_add_u32 {reg}, {reg}, 4096')
        st_ = [f'buffer_store_dwordx4 {vr(a+4*half,4)}, v{vL16}, s[{WS}:{WS+3}], {reg} offen offset:{(n%2)*2048+half*1024}{SC1}' for half in range(2)]
        return ops[:4] + ([ops[8]] if n == 2 else []) + [st_[0]] + ops[4:8] + [st_[1]]
    def wread3(m):
        g, r = divmod(m, 16); s, n = sn3(g, r)
        b = WF + 4 * (m % 8); off = SLOT3[g % 4] - 98304 + s * 4096
        p(f'ds_read_b64_tr_b16 {vr(b,2)}, v{v3W+n} offset:{off}')
        p(f'ds_read_b64_tr_b16 {vr(b+2,2)}, v{v3W+n} offset:{off+2048}')
    XE = TM and 'XE' in FXE.split(',')
    SX4, SO4 = SA, SB
    def p4_setup():
        SX4, SO4 = SA, SB
        p(f's_mov_b32 s53, s{sS}'); p(f's_mov_b32 s54, s{sRB}'); p(f's_mov_b32 s55, s{sCT}')
        srd(p, SX4, 4, 0, 2048*512*2)
        srd(p, 72, 24, 0, 2048*512*2)
        p('s_lshl_b32 s38, s54, 3'); p('s_add_u32 s40, s38, s53')
        p('s_lshl_b32 s38, s55, 2'); p(f's_and_b32 s39, s{sWave}, 3'); p('s_add_u32 s41, s38, s39')
        p(f's_lshr_b32 s42, s{sWave}, 2')
        p('s_lshl_b32 s38, s40, 15'); p('s_lshl_b32 s39, s41, 6'); p('s_add_u32 s43, s38, s39'); p('s_lshl_b32 s39, s42, 5'); p('s_add_u32 s43, s43, s39')
        p(f'v_and_b32 v3, 31, v{vL}'); p('v_lshlrev_b32 v3, 10, v3'); p(f'v_lshrrev_b32 v16, 5, v{vL}'); p('v_lshlrev_b32 v16, 3, v16'); p('v_add_u32 v3, v3, v16')
        for g in range(2): p(f'buffer_load_dwordx2 {vr(8+2*g,2)}, v3, s[{SX4}:{SX4+3}], s43 offen offset:{g*16}')
    def phase3(grp):
        vq = VQ(grp)
        if grp == 'A': only('w0', lambda: sy.poll_issue(WS, f's{sS3}', 16, 17))
        for m in range(PDW): wread3(m)
        for g in range(NCH):
            assert not any(it[2] == f'AL{g}' for it, t in vq.q), ('AL', g)
            for r in range(16):
                m = g * 16 + r; s, n = sn3(g, r)
                a = vr(ACC + 16 * n, 16); wf = vr(WF + 4 * (m % 8), 4); xf = ar(16 * (g % 4) + 4 * s, 4)
                cin = a if not (g == 0 and s == 0) else '0'
                p(f'v_mfma_f32_32x32x16_bf16 {a}, {wf}, {xf}, {cin}')
                if r == 16 - PDW - 1 and g < NCH - 1:
                    if g == 0 and grp == 'A': only('w0', lambda: sy.poll_check(WS, f's{sS3}', 16, 17, 8))
                    if g + 1 >= 3: p.waittok(f'X{g+1}')
                    p('s_barrier')
                if m + PDW < NCH * 16: wread3(m + PDW)
                if r == 16 - PDW and g + 3 < NCH: vq.add(itemsW3(g + 3, sT3), front=True)
                if r == 15 and g + 3 < NCH: vq.add(itemsA(g + 3))
                vq.slot(m)
                if TM and g == NCH - 1:
                    if r == 0: assert not vq.q; pt_base('s46')
                    if r == 1 and XE: p4_setup()
                    if r >= 5 and r % 4 in (1, 2):
                        ops = tile_ops(r // 4 - 1, 's46'); h = len(ops) - 5
                        for o in (ops[:h] if r % 4 == 1 else ops[h:]): p(o)
        if TM:
            for o in tile_ops(3, 's46'): p(o)
        p('s_branch K3_epi')
    p(f's_cmp_ge_u32 s{sWave}, 4'); p('s_cbranch_scc1 K3_B')
    phase3('A')
    p.label('K3_B')
    phase3('B')
    p.label('K3_epi')
    if not TM:
        pt_base('s38')
        for n in range(4):
            for o in tile_ops(n, 's38'): p(o)
    st(p, 8, 100); stamp_real(p, 42, sWave, 100)
    if not XE: p4_setup()
    p('s_waitcnt vmcnt(0)'); p('s_barrier')
    st(p, 11, 100)
    def s4():
        p('s_lshl_b32 s38, s54, 2'); p('s_add_u32 s38, s38, s55'); p('s_lshl_b32 s44, s38, 7'); p(f's_add_u32 s44, s44, {CNT_S4}')
        sy.arrive(WS, 's44', 16, 17)
        sy.spin(WS, 's44', 16, 17, 8)
    only('w0', s4)
    p('s_barrier')
    st(p, 12, 100)
    p('s_lshl_b32 s38, s40, 4'); p('s_add_u32 s38, s38, s41'); p('s_lshl_b32 s38, s38, 11'); p('s_lshl_b32 s39, s42, 10'); p('s_add_u32 s38, s38, s39'); p(f's_add_u32 s38, s38, {WS_PT}')
    for s in range(8):
        p(f'buffer_load_dwordx4 {vr(16+4*s,4)}, v{vL16}, s[{WS}:{WS+3}], s38 offen sc1')
        if s < 7: p(f's_add_u32 s38, s38, {64*16*2048}')
    A = 64
    for j in range(4):
        p(f'v_lshlrev_b32 v{A+2*j}, 16, v{8+j}'); p(f'v_and_b32 v{A+2*j+1}, 0xffff0000, v{8+j}')
    for s in range(8):
        for j in range(4):
            src = 16 + 4 * s + j
            p(f'v_lshlrev_b32 v5, 16, v{src}'); p(f'v_and_b32 v6, 0xffff0000, v{src}')
            p(f'v_add_f32 v{A+2*j}, v{A+2*j}, v5'); p(f'v_add_f32 v{A+2*j+1}, v{A+2*j+1}, v6')
    for j in range(4): p(f'v_cvt_pk_bf16_f32 v{8+j}, v{A+2*j}, v{A+2*j+1}')
    for g in range(2): p(f'buffer_store_dwordx2 {vr(8+2*g,2)}, v3, s[72:75], s43 offen offset:{g*16}' + (' sc1' if 'outsc1' in FXE else ' nt' if 'outnt' in FXE else ''))
    st(p, 9, 100); stamp_real(p, 10, sWave, 100)
    p.label('K_end'); p('s_endpgm')
    p.label('K_code_end')
    for i in p.ins:
        if 'sc1_ATOM' in i.text: i.text = i.text.replace('sc1_ATOM', 'sc1')
    p.finalize()
    return p

if __name__ == '__main__':
    out = [a for a in sys.argv[1:] if not a.startswith('-')][0]
    p = build()
    hdr = open('parallel_sum__compressed_kv_cla__swiglu_ffn__prompt.s.ref').read().split('; Override')[0]
    if '-l' in sys.argv: s = hdr + f'; @launch kernel={NAME} grid=(256,1,1) block=(512,1,1) lds=163840\n'
    else: s = hdr + f'; @launch grid=(256,1,1) block=(512,1,1) lds=163840\n'
    s += '.amdgcn_target "amdgcn-amd-amdhsa--gfx950"\n' + kernel_head(NAME) + p.text() + kernel_desc(NAME, 128, 128)
    open(out, 'w').write(s)
    print('written', out, len(s), 'instrs', len(p.ins))
```
